```python
import torch

def _softmax(x, axis=-1):
    return torch.softmax(x, dim=axis)
def _gelu(x):
    return torch.nn.functional.gelu(x, approximate="tanh")
def _silu(x):
    return torch.nn.functional.silu(x)
def _sigmoid(x):
    return torch.sigmoid(x)
def _layernorm(x, axis=-1, eps=1e-5):
    m = x.mean(dim=axis, keepdim=True)
    v = x.var(dim=axis, keepdim=True, unbiased=False)
    return (x - m) / torch.sqrt(v + eps)
def _scatter_add(tgt, idx, src, axis=0):
    return tgt.clone().index_add_(axis, idx, src)
def _segment_sum(src, seg, n):
    out = torch.zeros((n,) + src.shape[1:], dtype=src.dtype)
    return out.index_add_(0, seg, src)
def _pad(x, pw):
    flat = tuple(v for pair in reversed(pw) for v in pair)
    return torch.nn.functional.pad(x, flat)

kernel_name = 'parallel_sum__sliding_block__mixer_channel_mlp__prompt'

def setup_inputs():

    _w = (lambda a: (lambda t: t.to(torch.bfloat16) if t.is_floating_point() else t)(torch.as_tensor(a)))
    def _A_setup():
        B, S, D = 1, 2048, 640
        return {
            "x": _w((lambda *s: torch.randn(*s, dtype=torch.bfloat16) * 0.05)(B, S, D)),
            "wqkv": _w((lambda *s: torch.randn(*s, dtype=torch.bfloat16) * 0.05)(D, 3 * D)),
            "wo": _w((lambda *s: torch.randn(*s, dtype=torch.bfloat16) * 0.05)(D, D)),
        }
    _A_in = _A_setup()

    def _B_setup():
        B, S, D, F = 1, 2048, 640, 1728
        return {
            "x": _w((lambda *s: torch.randn(*s, dtype=torch.bfloat16) * 0.05)(B, S, D)),
            "w1": _w((lambda *s: torch.randn(*s, dtype=torch.bfloat16) * 3.2)(D, F) * (D ** -0.5)),
            "b1": _w((lambda *s: torch.randn(*s, dtype=torch.bfloat16) * 1.6)(F)),
            "w2": _w((lambda *s: torch.randn(*s, dtype=torch.bfloat16) * 0.2)(F, D) * (F ** -0.5)),
            "b2": _w((lambda *s: torch.randn(*s, dtype=torch.bfloat16) * 0.4)(D)),
        }
    _B_in = _B_setup()

    return {
        "A_x": _A_in["x"],
        "A_wqkv": _A_in["wqkv"],
        "A_wo": _A_in["wo"],
        "B_x": _B_in["x"],
        "B_w1": _B_in["w1"],
        "B_b1": _B_in["b1"],
        "B_w2": _B_in["w2"],
        "B_b2": _B_in["b2"],
    }

def reference(A_x, A_wqkv, A_wo, B_x, B_w1, B_b1, B_w2, B_b2):
    def _A_ref(x, wqkv, wo):
        B, S, D = x.shape
        H = 32; Dh = D // H; W = 256
        qkv = (lambda x, *d: x.permute(*d))((x @ wqkv).reshape(B, S, 3, H, Dh), 2, 0, 3, 1, 4)
        q, k, v = qkv[0], qkv[1], qkv[2]
        scores = torch.einsum("bhqd,bhkd->bhqk", q, k) * (Dh ** -0.5)
        idx = torch.arange(S)
        mask = (idx[:, None] - idx[None, :] >= 0) & (idx[:, None] - idx[None, :] < W)
        scores = torch.where(mask[None, None], scores, -1e9)
        p = _softmax(scores, axis=-1)
        o = torch.einsum("bhqk,bhkd->bhqd", p, v)
        return (lambda x, *d: x.permute(*d))(o, 0, 2, 1, 3).reshape(B, S, D) @ wo

    def _B_ref(x, w1, b1, w2, b2):
        y = _layernorm(x, axis=-1)
        h = _gelu(torch.einsum("bsd,df->bsf", y, w1) + b1)
        return torch.einsum("bsf,fd->bsd", h, w2) + b2

    x = A_x
    xn = _layernorm(x, axis=-1)
    return x + _A_ref(xn, A_wqkv, A_wo) + _B_ref(xn, B_w1, B_b1, B_w2, B_b2)
```

```python
import re

TRANS = ("v_exp_f32", "v_log_f32", "v_rcp_f32", "v_rsq_f32", "v_sqrt_f32", "v_sin_f32", "v_cos_f32")
_reg_re = re.compile(r"^(-|abs\(|\|)?([vas])(\d+)\)?\|?$")
_rng_re = re.compile(r"^(-)?([vas])\[(\d+):(\d+)\]$")

def regs_of(tok):
    tok = tok.strip()
    m = _rng_re.match(tok)
    if m:
        return [f"{m.group(2)}{i}" for i in range(int(m.group(3)), int(m.group(4)) + 1)]
    m = _reg_re.match(tok)
    if m:
        return [f"{m.group(2)}{m.group(3)}"]
    if tok in ("vcc", "vcc_lo", "vcc_hi"): return ["vcc"]
    if tok in ("exec", "exec_lo", "exec_hi"): return ["exec"]
    if tok == "m0": return ["m0"]
    return []

def split_ops(s):
    out, depth, cur = [], 0, ""
    for ch in s:
        if ch in "[(": depth += 1
        if ch in "])": depth -= 1
        if ch == "," and depth == 0:
            out.append(cur.strip()); cur = ""
        else:
            cur += ch
    if cur.strip(): out.append(cur.strip())
    return out

class I:
    __slots__ = ("text", "op", "rd", "wr", "kind", "passes", "tag", "maybe", "srcc", "ab", "wide", "cost", "comment")
    def __init__(self, text, tag=None):
        self.text = text.strip()
        self.tag = tag
        self.maybe = False
        self.passes = 0
        self.srcc = []
        self.ab = []
        self.wide = False
        t = self.text.split(";")[0].strip()
        if t.endswith(":"):
            self.op = "label"; self.kind = "label"; self.rd = []; self.wr = []; self.cost = 0; return
        parts = t.split(None, 1)
        op = parts[0]; self.op = op
        rest = parts[1] if len(parts) > 1 else ""
        ops = split_ops(rest)
        mods = ""
        if ops:
            lp = ops[-1].split(None, 1)
            ops[-1] = lp[0]
            mods = lp[1] if len(lp) > 1 else ""
        R = [regs_of(o) for o in ops]
        flat = lambda L: [r for x in L for r in x]
        base = re.sub(r"_(e32|e64|dpp|sdwa)$", "", op)
        self.cost = 4
        if op.startswith("v_mfma"):
            self.kind = "mfma"
            self.wr = R[0]; self.ab = R[1] + R[2]; self.srcc = R[3]; self.rd = self.ab + self.srcc
            if "32x32x16" in op or "32x32x8" in op: self.passes = 8
            elif "16x16x32" in op or "16x16x16" in op: self.passes = 4
            elif "4x4x4" in op: self.passes = 2
            else: raise ValueError(op)
            self.cost = 8
        elif op.startswith("v_"):
            self.kind = "trans" if base in TRANS else "valu"
            if self.kind == "trans": self.cost = 8
            if base.startswith("v_cmp"):
                self.wr = R[0]; self.rd = flat(R[1:])
                if base.startswith("v_cmpx"): self.wr = self.wr + ["exec"]
            elif base.startswith("v_permlane") and "swap" in base:
                self.wr = R[0] + R[1]; self.rd = R[0] + R[1]
            elif base in ("v_fmac_f32", "v_dot2c_f32_bf16", "v_pk_fmac_f16"):
                self.wr = R[0]; self.rd = flat(R)
            elif base in ("v_add_co_u32", "v_sub_co_u32", "v_addc_co_u32", "v_subb_co_u32"):
                self.wr = R[0] + R[1]; self.rd = flat(R[2:])
            elif base == "v_writelane_b32":
                self.wr = R[0]; self.rd = flat(R)
            elif base == "v_nop":
                self.wr = []; self.rd = []
            else:
                self.wr = R[0]; self.rd = flat(R[1:])
                if op.endswith("_dpp") or "row_" in mods or "quad_perm" in mods:
                    self.rd = self.rd + R[0]
            self.rd = self.rd + ["exec"]
        elif op.startswith("ds_read"):
            self.kind = "dsread"; self.wr = R[0]; self.rd = flat(R[1:]) + ["exec"]
        elif op.startswith("ds_write") or op.startswith("ds_add"):
            self.kind = "dswrite"; self.wr = []; self.rd = flat(R) + ["exec"]
        elif op.startswith("ds_bpermute") or op.startswith("ds_swizzle") or op.startswith("ds_permute"):
            self.kind = "dsread"; self.wr = R[0]; self.rd = flat(R[1:]) + ["exec"]
        elif op.startswith("buffer_load") or op.startswith("global_load"):
            if re.search(r"\blds\b", mods) or "_lds_" in op:
                self.kind = "dma"; self.wr = []; self.rd = flat(R) + ["m0", "exec"]
            else:
                self.kind = "vload"; self.wr = R[0]; self.rd = flat(R[1:]) + ["exec"]
        elif op.startswith("buffer_store") or op.startswith("global_store"):
            self.kind = "vstore"; self.wr = []; self.rd = flat(R) + ["exec"]
            if op.endswith("x4") or op.endswith("x3"):
                self.wide = R[0] if op.startswith("buffer") else R[1]
        elif op.startswith("buffer_atomic") or op.startswith("global_atomic"):
            self.kind = "vstore"; self.wr = []; self.rd = flat(R) + ["exec"]
            if "sc0" in mods: self.kind = "vload"; self.wr = R[0]
        elif op in ("buffer_inv", "buffer_wbl2"):
            self.kind = "vstore"; self.wr = []; self.rd = []
        elif op.startswith("s_load") or op in ("s_memtime", "s_memrealtime") or op.startswith("s_buffer_load"):
            self.kind = "smem"; self.wr = R[0]; self.rd = flat(R[1:])
        elif op == "s_waitcnt":
            self.kind = "wait"; self.wr = []; self.rd = []
        elif op == "s_barrier":
            self.kind = "barrier"; self.wr = []; self.rd = []
        elif op == "s_nop":
            self.kind = "nop"; self.wr = []; self.rd = []
        elif op.startswith("s_cbranch") or op == "s_branch" or op == "s_endpgm":
            self.kind = "branch"; self.wr = []; self.rd = ["scc", "vcc", "exec"]
        elif op in ("s_sleep", "s_setprio", "s_sethalt"):
            self.kind = "salu"; self.wr = []; self.rd = []
        elif op.startswith("s_cmp") or op.startswith("s_bitcmp"):
            self.kind = "salu"; self.wr = ["scc"]; self.rd = flat(R)
        elif op.startswith("s_"):
            self.kind = "salu"; self.wr = R[0] + ["scc"]; self.rd = flat(R[1:])
            if "saveexec" in op: self.wr = self.wr + ["exec"]; self.rd = self.rd + ["exec"]
            if op in ("s_addk_i32", "s_mulk_i32"): self.rd = self.rd + R[0]
            if op.startswith("s_cselect") or op.startswith("s_addc") or op.startswith("s_subb"): self.rd = self.rd + ["scc"]
        elif op.startswith("."):
            self.kind = "label"; self.wr = []; self.rd = []; self.cost = 0
        else:
            raise ValueError("unknown instruction: " + text)

class W:
    def __init__(self, what, arg=None):
        self.what = what; self.arg = arg
        self.kind = "pseudo"; self.cost = 4; self.maybe = False

class Grp:
    def __init__(self, items):
        self.items = items; self.cost = sum(i.cost for i in items); self.kind = "grp"; self.maybe = False

def flat(L):
    out = []
    for i in L:
        if isinstance(i, Grp): out.extend(i.items)
        else: out.append(i)
    return out

class Asm:
    def atomic(self, text):
        b = Asm(); b._maybe = self._maybe; b(text); self.L.append(Grp(b.L))
    def __init__(self):
        self.L = []
        self._maybe = 0
        self._lab = 0
    def __call__(self, text, tag=None):
        for line in text.strip("\n").split("\n"):
            line = line.strip()
            if not line or line.startswith(";"): continue
            i = I(line, tag)
            i.maybe = self._maybe > 0
            self.L.append(i)
    def add(self, items):
        for i in items:
            i.maybe = i.maybe or self._maybe > 0
            self.L.append(i)
    def wait_vm(self, tag=None):
        w = W("vm", tag); w.maybe = self._maybe > 0; self.L.append(w)
    def wait_lgkm(self):
        w = W("lgkm"); w.maybe = self._maybe > 0; self.L.append(w)
    def label(self, stem="L"):
        self._lab += 1
        return f"{stem}_{self._lab}"
    class _Skip:
        def __init__(s, a, br, name): s.a, s.br, s.name = a, br, name
        def __enter__(s):
            s.a(f"{s.br} {s.name}"); s.a._maybe += 1
        def __exit__(s, *e):
            s.a._maybe -= 1; s.a(f"{s.name}:")
    def skip(self, branch):
        return Asm._Skip(self, branch, self.label("Lskip"))

def sub(f):
    a = Asm(); a._lab = sub.n; f(a); sub.n = a._lab + 1000; return a.L
sub.n = 100000

def insert_waits(L, verbose=False):
    out = []
    vm = []
    lg = []
    def emit_wait(nvm=None, nlg=None):
        parts = []
        if nvm is not None: parts.append(f"vmcnt({min(nvm,63)})")
        if nlg is not None: parts.append(f"lgkmcnt({min(nlg,15)})")
        out.append(I("s_waitcnt " + " ".join(parts)))
    def need(queue, idx):
        return sum(1 for q in queue[idx + 1:] if not q["maybe"])
    for it in L:
        nvm = nlg = None
        if isinstance(it, W):
            if it.what == "vm":
                idxs = [k for k, q in enumerate(vm) if it.arg is None or q["tag"] == it.arg or (isinstance(it.arg, (list, tuple, set)) and q["tag"] in it.arg)]
                if idxs:
                    k = max(idxs); nvm = need(vm, k)
                    if not it.maybe: del vm[:k + 1]
                    emit_wait(nvm, None); out[-1].maybe = it.maybe
            else:
                if lg:
                    emit_wait(None, 0); out[-1].maybe = it.maybe
                    if not it.maybe: lg.clear()
            continue
        touched = set(it.rd) | set(it.wr)
        k = max([j for j, q in enumerate(vm) if q["regs"] & touched], default=-1)
        if k >= 0:
            nvm = need(vm, k)
            if not it.maybe: del vm[:k + 1]
        k = max([j for j, q in enumerate(lg) if q["regs"] & touched], default=-1)
        if k >= 0:
            if any(q["smem"] for q in lg): nlg = 0; kk = len(lg) - 1
            else: nlg = need(lg, k); kk = k
            if not it.maybe: del lg[:kk + 1]
        if nvm is not None or nlg is not None:
            if nvm is not None and nvm > 63: nvm = 63
            emit_wait(nvm, nlg); out[-1].maybe = it.maybe
        if it.kind == "wait":
            m = re.search(r"vmcnt\((\d+)\)", it.text)
            if m and not it.maybe:
                n = int(m.group(1))
                while sum(1 for q in vm if True) > n and vm:
                    if need(vm, 0) >= n: vm.pop(0)
                    else: break
            m = re.search(r"lgkmcnt\((\d+)\)", it.text)
            if m and not it.maybe:
                n = int(m.group(1))
                if n == 0: lg.clear()
        out.append(it)
        if it.kind in ("vload", "vstore", "dma"):
            vm.append(dict(regs=set(it.wr), tag=it.tag, maybe=it.maybe))
            if len(vm) > 63 + 40:
                pass
        elif it.kind in ("dsread", "dswrite"):
            lg.append(dict(regs=set(it.wr), smem=False, maybe=it.maybe))
        elif it.kind == "smem":
            lg.append(dict(regs=set(it.wr), smem=True, maybe=it.maybe))
    return out

def states(i):
    if i.kind == "label": return 0
    if i.kind == "nop": return int(i.text.split()[1]) + 1
    return 1

def insert_hazard_nops(L, report=None):
    out = []
    WIN = 24
    for it in L:
        if it.kind in ("label", "nop", "wait", "barrier"):
            out.append(it); continue
        need = 0; why = None
        dist = 0
        rd, wr = set(it.rd), set(it.wr)
        isvalu = it.kind in ("valu", "trans")
        base = re.sub(r"_(e32|e64|dpp|sdwa)$", "", it.op)
        for p in reversed(out):
            if dist >= WIN: break
            if p.kind == "label" and not p.op.startswith("."):
                pass
            req = 0
            pw = set(p.wr)
            if p.kind == "mfma":
                ps = p.passes
                if it.kind == "mfma":
                    if pw & set(it.ab): req = max(req, {2: 5, 4: 8, 8: 12}[ps])
                    if pw & set(it.srcc):
                        if list(p.wr) == list(it.srcc) and ps == it.passes: req = max(req, 2 if ps == 2 else 0)
                        else: req = max(req, {2: 4, 4: 6, 8: 10}[ps])
                    elif pw & wr and not (pw & set(it.srcc)):
                        req = max(req, {2: 5, 4: 8, 8: 12}[ps])
                elif isvalu or it.kind in ("vload", "vstore", "dma", "dsread", "dswrite"):
                    if pw & (rd | wr): req = max(req, {2: 5, 4: 8, 8: 12}[ps])
                    if isvalu and set(p.srcc) & wr: req = max(req, {2: 1, 4: 3, 8: 7}[ps])
            elif p.kind in ("valu", "trans"):
                pv = {r for r in pw if r[0] in "va" and r != "vcc"}
                psg = {r for r in pw if r[0] == "s" or r == "vcc"}
                if it.kind == "mfma" and pv & rd: req = max(req, 2)
                if it.kind == "mfma" and "exec" in pw: req = max(req, 4)
                if p.kind == "trans" and it.kind in ("valu", "mfma", "vstore", "dswrite") and pv & rd: req = max(req, 1 if it.kind != "mfma" else 2)
                if isvalu and base.startswith("v_permlane") and pv & rd: req = max(req, 2)
                if isvalu and base in ("v_readfirstlane_b32", "v_readlane_b32") and pv & rd: req = max(req, 1)
                if isvalu and (it.op.endswith("_dpp") or "row_" in it.text or "quad_perm" in it.text) and pv & rd: req = max(req, 2)
                if isvalu and (it.op.endswith("_dpp") or "row_" in it.text) and "exec" in pw: req = max(req, 5)
                if isvalu and psg & rd: req = max(req, 2 if base not in ("v_readlane_b32", "v_writelane_b32") else 4)
                if it.kind in ("vload", "vstore", "dma") and psg & rd: req = max(req, 5)
                if it.kind in ("salu", "smem", "branch") and psg & rd: req = max(req, 1)
            elif p.kind == "salu":
                if "m0" in pw and it.kind == "dma": req = max(req, 1)
            elif p.kind == "vstore" and p.wide:
                if set(p.wide) & wr: req = max(req, 2 if isvalu else 1)
            if req - dist > need:
                need = req - dist; why = p.text
            dist += states(p)
        if need > 0:
            if report is not None: report.append((need, why, it.text))
            n = need
            while n > 0:
                k = min(n, 16)
                x = I(f"s_nop {k-1}"); x.maybe = it.maybe
                out.append(x); n -= k
        out.append(it)
    return out

def finalize(L, report=None):
    L = flat(L)
    L = insert_waits(L)
    L = insert_hazard_nops(L, report)
    return L

def render(L):
    s = []
    for i in L:
        s.append(i.text if i.kind == "label" else "  " + i.text)
    return "\n".join(s) + "\n"

def interleave(main, fillers, budget=24, start=0):
    out = []
    q = list(fillers)
    credit = 0
    for gi, g in enumerate(main):
        out.extend(g)
        if gi < start: continue
        free = 0
        for it in g:
            if it.kind == "mfma": free += it.passes * 4 - it.cost
            else: free -= it.cost
        credit += free if budget is None else min(free, budget * sum(1 for it in g if it.kind == "mfma"))
        while q:
            if isinstance(q[0], tuple):
                if q[0][1] <= gi: q.pop(0); continue
                else: break
            if q[0].cost <= credit or (isinstance(q[0], Grp) and credit >= 8):
                credit -= q[0].cost; out.append(q.pop(0))
            else: break
        if credit > 16: credit = 16
    out.extend(x for x in q if not isinstance(x, tuple))
    return out

KD = """.section .rodata,"a"
.p2align 6
.amdhsa_kernel {name}
  .amdhsa_next_free_vgpr {nfv}
  .amdhsa_next_free_sgpr {sgpr}
  .amdhsa_accum_offset {acc}
  .amdhsa_group_segment_fixed_size 0
  .amdhsa_kernarg_size 88
  .amdhsa_user_sgpr_count 2
  .amdhsa_user_sgpr_kernarg_segment_ptr 1
  .amdhsa_system_sgpr_workgroup_id_x 1
.end_amdhsa_kernel
"""

def kernel(name, L, vgpr=256, agpr=256, sgpr=102):
    acc = (vgpr + 3) // 4 * 4
    return (f".text\n.globl {name}\n.p2align 8\n.type {name},@function\n{name}:\n" + render(L) + "  s_endpgm\n" +
            KD.format(name=name, nfv=acc + agpr, sgpr=sgpr, acc=acc))
```

```python
S, D, F, NH, DH = 2048, 640, 1728, 32, 20
WS_FLAGS = 0x0
WS_STATS = 0x10000
WS_WF    = 0x100000
WS_QKV   = 0x400000
WS_H     = 0xC00000
WS_OF    = 0x1300000
WS_OG    = 0x1500000
WS_END   = 0x1600000
WS_DBG   = 0x1600000
WS_SIZE  = 0x1700000
NAME = "parallel_sum__sliding_block__mixer_channel_mlp__prompt"
import math
LOG2E = 1.4426950408889634
QSCALE = LOG2E / math.sqrt(20.0)
GA = 2.0 * math.sqrt(2.0 / math.pi) * LOG2E
GB = GA * 0.044715
import struct
def f2u(x): return struct.unpack("<I", struct.pack("<f", x))[0]
def fhex(x): return "0x%08x" % f2u(x)
```

```python
import sys
from asm import *
from common import *

sWG, sWAVE = 2, 3
SRD_X, SRD_WQ, SRD_W1, SRD_WS, SRD_OUT, SRD_T, SRD_T2 = 8, 12, 16, 20, 24, 28, 32
P_X, P_WQ, P_WO, P_BX, P_W1, P_B1, P_W2, P_B2 = 36, 38, 40, 42, 44, 46, 48, 50
P_OUT, P_DBG, P_WS = 52, 54, 56
sRB, sCG, sTH, sFH = 58, 59, 60, 61
sKX, sKWQ, sKW1 = 62, 63, 64
sT0, sT1, sT2, sT3, sT4, sT5, sT6, sT7 = 65, 66, 67, 68, 69, 70, 71, 72
sROT = 73
sHGA, sHGB = 74, 75
sQS = 76
sEX = 78
sST0, sST1, sST2, sST3 = 80, 81, 82, 83
sH, sQB = 84, 85
sTB, sCB = 86, 87
sM0X, sM0W = 88, 89
sTS = 90

def srd(n): return f"s[{n}:{n+3}]"
def v(n, k=1): return f"v{n}" if k == 1 else f"v[{n}:{n+k-1}]"
def acc(n, k=1): return f"a{n}" if k == 1 else f"a[{n}:{n+k-1}]"

def mk_srd(a, n, p, size):
    a(f"s_mov_b32 s{n}, s{p}\ns_mov_b32 s{n+1}, s{p+1}\ns_mov_b32 s{n+2}, {size}\ns_mov_b32 s{n+3}, 0x20000")

def entry(a, vLANE):
    a(f"s_cmp_ge_u32 s{sWG}, 256")
    a(f"s_cbranch_scc1 L_end_{a.kname}")
    a(f"s_load_dwordx16 s[36:51], s[0:1], 0")
    a(f"s_load_dwordx4 s[52:55], s[0:1], 64")
    a(f"s_load_dwordx2 s[56:57], s[0:1], 80")
    a(f"v_lshrrev_b32 v1, 6, v0")
    a(f"v_and_b32 v{vLANE}, 63, v0")
    a(f"v_readfirstlane_b32 s{sWAVE}, v1")
    a(f"""s_and_b32 s{sT0}, s{sWG}, 7
s_lshr_b32 s{sT1}, s{sWG}, 3
s_lshr_b32 s{sRB}, s{sT0}, 2
s_lshl_b32 s{sRB}, s{sRB}, 3
s_and_b32 s{sT2}, s{sT1}, 7
s_add_u32 s{sRB}, s{sRB}, s{sT2}
s_and_b32 s{sCG}, s{sT0}, 3
s_lshl_b32 s{sCG}, s{sCG}, 2
s_lshr_b32 s{sT3}, s{sT1}, 3
s_add_u32 s{sCG}, s{sCG}, s{sT3}
s_mul_i32 s{sT2}, s{sT2}, 5
s_lshr_b32 s{sT2}, s{sT2}, 2
s_mul_i32 s{sT3}, s{sT3}, 5
s_lshr_b32 s{sT3}, s{sT3}, 1
s_add_u32 s{sROT}, s{sT2}, s{sT3}
s_cmp_ge_u32 s{sROT}, 10
s_cselect_b32 s{sT2}, 10, 0
s_sub_u32 s{sROT}, s{sROT}, s{sT2}
s_lshl_b32 s{sH}, s{sT0}, 2
s_lshr_b32 s{sT3}, s{sT1}, 3
s_add_u32 s{sH}, s{sH}, s{sT3}
s_and_b32 s{sQB}, s{sT1}, 7
s_lshl_b32 s{sTB}, s{sT0}, 2
s_and_b32 s{sT3}, s{sT1}, 3
s_add_u32 s{sTB}, s{sTB}, s{sT3}
s_lshr_b32 s{sCB}, s{sT1}, 2
s_and_b32 s{sTH}, s{sWAVE}, 1
s_lshr_b32 s{sFH}, s{sWAVE}, 1""")
    mk_srd(a, SRD_X, P_X, S * D * 2)
    mk_srd(a, SRD_WQ, P_WQ, D * 3 * D * 2)
    mk_srd(a, SRD_W1, P_W1, D * F * 2)
    mk_srd(a, SRD_WS, P_WS, WS_SIZE)
    mk_srd(a, SRD_OUT, P_OUT, S * D * 2)

def reduce32(a, x, t):
    for r in (8, 4, 2, 1):
        a(f"v_add_f32_dpp v{x}, v{x}, v{x} row_ror:{r} row_mask:0xf bank_mask:0xf")
    a(f"v_mov_b32 v{t}, v{x}")
    a(f"v_permlane16_swap_b32 v{x}, v{t}")
    a(f"v_add_f32 v{x}, v{x}, v{t}")

def pro_issue(a, vL, vb, lds_base):
    X0 = vb
    t0, t1, t2 = vb + 10, vb + 11, vb + 12
    a(f"""s_lshl_b32 s{sT0}, s{sRB}, 7
s_lshl_b32 s{sT1}, s{sCG}, 3
s_add_u32 s{sT0}, s{sT0}, s{sT1}
s_lshl_b32 s{sT1}, s{sWAVE}, 1
s_add_u32 s{sT0}, s{sT0}, s{sT1}
v_lshrrev_b32 v{t0}, 5, v{vL}
v_add_u32 v{t0}, s{sT0}, v{t0}
v_mul_u32_u24 v{t1}, 1280, v{t0}
v_and_b32 v{t2}, 31, v{vL}
v_lshl_add_u32 v{t0}, v{t2}, 3, v{t1}
v_lshl_add_u32 v{t1}, v{t2}, 4, v{t1}
buffer_load_dwordx4 {v(X0,4)}, v{t1}, {srd(SRD_X)}, 0 offen
buffer_load_dwordx4 {v(X0+4,4)}, v{t1}, {srd(SRD_X)}, 0 offen offset:512
buffer_load_dwordx2 {v(X0+8,2)}, v{t0}, {srd(SRD_X)}, 0 offen offset:1024""")
    a(f"""s_mul_i32 s{sT0}, s{sWG}, 3
s_add_u32 s{sT0}, s{sT0}, s{sWAVE}
s_cmp_eq_u32 s{sWAVE}, 3
s_cselect_b32 s{sT0}, 1000, s{sT0}
s_mul_i32 s{sT1}, s{sT0}, 6554
s_lshr_b32 s{sT1}, s{sT1}, 16
s_mul_i32 s{sT2}, s{sT1}, 10
s_sub_u32 s{sT2}, s{sT0}, s{sT2}
s_mov_b32 s{sST0}, s{sT1}
s_mov_b32 s{sST1}, s{sT2}
s_cmp_ge_u32 s{sT0}, 740""")
    with a.skip("s_cbranch_scc1"):
        a(f"""s_lshl_b32 s{sT3}, s{sT1}, 5
s_cmp_lt_u32 s{sT1}, 54
s_cselect_b32 s{SRD_T}, s{P_W2}, s{P_WO}
s_cselect_b32 s{SRD_T+1}, s{P_W2+1}, s{P_WO+1}
s_mov_b32 s{SRD_T+2}, {D*D*2}
s_cselect_b32 s{SRD_T+2}, {F*D*2}, s{SRD_T+2}
s_mov_b32 s{SRD_T+3}, 0x20000
s_mov_b32 s{sT4}, 8
s_mov_b32 s{sT5}, 16
s_mov_b32 s{sT6}, 4""")
        with a.skip("s_cbranch_scc1"):
            a(f"""s_sub_u32 s{sT3}, s{sT1}, 54
s_mul_i32 s{sT3}, s{sT3}, 40
s_mov_b32 s{sT4}, 4
s_mov_b32 s{sT5}, 20
s_mov_b32 s{sT6}, 8
s_cmp_lt_u32 s{sT1}, 70""")
            with a.skip("s_cbranch_scc1"):
                a(f"""s_sub_u32 s{sT3}, s{sT1}, 70
s_mul_i32 s{sT3}, s{sT3}, 160
s_add_u32 s{sT3}, s{sT3}, 16
s_mov_b32 s{sT4}, 40
s_mov_b32 s{sT5}, 80
s_mov_b32 s{sT6}, 20""")
        a(f"""v_lshrrev_b32 v{t0}, 5, v{vL}
v_mul_u32_u24 v{t0}, s{sT6}, v{t0}
v_bfe_u32 v{t1}, v{vL}, 3, 2
v_add_u32 v{t0}, v{t0}, v{t1}
v_mul_u32_u24 v{t0}, 1280, v{t0}
v_and_b32 v{t1}, 7, v{vL}
v_lshl_add_u32 v{t0}, v{t1}, 4, v{t0}
s_lshl_b32 s{sT7}, s{sT2}, 7
v_add_u32 v{t0}, s{sT7}, v{t0}
s_mul_i32 s{sT3}, s{sT3}, 1280
s_mul_i32 s{sT4}, s{sT4}, 1280
s_mul_i32 s{sT5}, s{sT5}, 1280
s_lshl_b32 s{sT7}, s{sWAVE}, 12
s_add_u32 m0, s{sT7}, {lds_base}
s_add_u32 s{sT6}, s{sT3}, s{sT5}
buffer_load_dwordx4 v{t0}, {srd(SRD_T)}, s{sT3} offen lds
s_add_u32 m0, s{sT7}, {lds_base + 1024}
s_add_u32 s{sT3}, s{sT3}, s{sT4}
buffer_load_dwordx4 v{t0}, {srd(SRD_T)}, s{sT3} offen lds
s_add_u32 m0, s{sT7}, {lds_base + 2048}
s_nop 0
buffer_load_dwordx4 v{t0}, {srd(SRD_T)}, s{sT6} offen lds
s_add_u32 m0, s{sT7}, {lds_base + 3072}
s_add_u32 s{sT6}, s{sT6}, s{sT4}""")
        a(f"buffer_load_dwordx4 v{t0}, {srd(SRD_T)}, s{sT6} offen lds", tag="repack")

def pro_compute(a, vL, vb, lds_base):
    X0 = vb; E = vb + 14
    t0, t1, t2, t3 = vb + 10, vb + 11, vb + 12, vb + 13
    sm = vb + 34; R = vb + 36
    for i in range(10):
        a(f"v_lshlrev_b32 v{E+2*i}, 16, v{X0+i}\nv_and_b32 v{E+2*i+1}, 0xffff0000, v{X0+i}")
    a(f"v_add_f32 v{sm}, v{E}, v{E+1}\nv_add_f32 v{t0}, v{E+2}, v{E+3}")
    for i in range(4, 20, 2):
        a(f"v_add_f32 v{sm}, v{sm}, v{E+i}\nv_add_f32 v{t0}, v{t0}, v{E+i+1}")
    a(f"v_add_f32 v{sm}, v{sm}, v{t0}")
    reduce32(a, sm, t0)
    a(f"v_mul_f32 v{sm}, {fhex(-1.0/640)}, v{sm}")
    for i in range(20):
        a(f"v_add_f32 v{E+i}, v{E+i}, v{sm}")
    a(f"v_mul_f32 v{t1}, v{E}, v{E}\nv_mul_f32 v{t2}, v{E+1}, v{E+1}")
    for i in range(2, 20, 2):
        a(f"v_fmac_f32 v{t1}, v{E+i}, v{E+i}\nv_fmac_f32 v{t2}, v{E+i+1}, v{E+i+1}")
    a(f"v_add_f32 v{t1}, v{t1}, v{t2}")
    reduce32(a, t1, t0)
    a(f"""v_mul_f32 v{t1}, {fhex(1.0/640)}, v{t1}
v_add_f32 v{t2}, {fhex(1e-5)}, v{t1}
v_rsq_f32 v{R+4}, v{t2}
v_sqrt_f32 v{t3}, v{t2}
v_mul_f32 v{t0}, v{R+4}, v{R+4}
v_mul_f32 v{t0}, v{t0}, v{t1}
v_add_f32 v{t0}, {fhex(1e-5)}, v{t0}
v_rsq_f32 v{t1}, v{t0}
v_sqrt_f32 v{t0}, v{t0}
v_mul_f32 v{t1}, v{t1}, v{R+4}
v_mul_f32 v{R+7}, v{t0}, v{t3}
v_mul_f32 v{R+5}, {fhex(-GA)}, v{t1}
v_mul_f32 v{t0}, v{t1}, v{t1}
v_mul_f32 v{t0}, v{t0}, v{t1}
v_mul_f32 v{R+6}, {fhex(-GB)}, v{t0}
v_cvt_pk_bf16_f32 v{R+1}, v{sm}, v{R+7}
v_lshlrev_b32 v{t0}, 16, v{R+1}
v_and_b32 v{t1}, 0xffff0000, v{R+1}
v_sub_f32 v{t2}, v{sm}, v{t0}
v_sub_f32 v{t3}, v{R+7}, v{t1}
v_cvt_pk_bf16_f32 v{R}, v{t0}, v{t2}
v_cvt_pk_bf16_f32 v{R+2}, v{t3}, 0
v_mov_b32 v{R+3}, 0
s_lshl_b32 s{sT0}, s{sRB}, 7
s_lshl_b32 s{sT1}, s{sCG}, 3
s_add_u32 s{sT0}, s{sT0}, s{sT1}
s_lshl_b32 s{sT1}, s{sWAVE}, 1
s_add_u32 s{sT0}, s{sT0}, s{sT1}
s_lshl_b32 s{sT0}, s{sT0}, 5
s_add_u32 s{sT0}, s{sT0}, {WS_STATS}
v_and_b32 v{t0}, 32, v{vL}
s_mov_b32 s{sT2}, 1
s_mov_b32 s{sT3}, 1
s_mov_b64 exec, s[{sT2}:{sT3}]
buffer_store_dwordx4 {v(R,4)}, v{t0}, {srd(SRD_WS)}, s{sT0} offen sc1
buffer_store_dwordx4 {v(R+4,4)}, v{t0}, {srd(SRD_WS)}, s{sT0} offen offset:16 sc1
s_mov_b64 exec, -1""".replace(f"s[{sT2}:{sT3}]", f"s[{sEX}:{sEX+1}]").replace(f"s_mov_b32 s{sT2}, 1\ns_mov_b32 s{sT3}, 1", f"s_mov_b32 s{sEX}, 1\ns_mov_b32 s{sEX+1}, 1"))
    a(f"s_cmp_ge_u32 s{sST0}, 74")
    with a.skip("s_cbranch_scc1"):
        Fr = vb + 14
        a(f"""v_lshrrev_b32 v{t0}, 4, v{vL}
v_lshlrev_b32 v{t0}, 3, v{t0}
v_bfe_u32 v{t1}, v{vL}, 2, 2
v_add_u32 v{t0}, v{t0}, v{t1}
v_lshlrev_b32 v{t0}, 7, v{t0}
v_and_b32 v{t1}, 3, v{vL}
v_lshl_add_u32 v{t0}, v{t1}, 3, v{t0}
s_lshl_b32 s{sT7}, s{sWAVE}, 12
s_add_u32 s{sT7}, s{sT7}, {lds_base}
v_add_u32 v{t0}, s{sT7}, v{t0}
s_mul_i32 s{sT0}, s{sST0}, 40
s_lshl_b32 s{sT1}, s{sST1}, 2
s_add_u32 s{sT0}, s{sT0}, s{sT1}
s_lshl_b32 s{sT0}, s{sT0}, 10
s_add_u32 s{sT0}, s{sT0}, {WS_WF}
v_lshlrev_b32 v{t1}, 4, v{vL}""")
        a.wait_vm("repack")
        for nb in range(4):
            for u in range(2):
                a(f"ds_read_b64_tr_b16 {v(Fr+4*nb+2*u,2)}, v{t0} offset:{u*512+nb*32}")
        for nb in range(4):
            a(f"buffer_store_dwordx4 {v(Fr+4*nb,4)}, v{t1}, {srd(SRD_WS)}, s{sT0} offen offset:{nb*1024} sc1")

def k0():
    a = Asm(); a.kname = "k0"
    entry(a, 2)
    pro_issue(a, 2, 8, 0)
    pro_compute(a, 2, 8, 0)
    a.wait_vm()
    a("L_end_k0:")
    return a

class G1:
    ACC1 = 0
    ACC2A = 64
    ACC2B = 0
    WFR = 96
    CS = 112
    SEL = 120
    VX = 124
    VW = 128
    VW1 = 132
    AX = 134
    AW = 138
    AW2 = 142
    LANE = 144
    STAT = 146
    AUG = 164
    B1 = 172
    VST = 174
    VSH = 175
    T = 176
    XV = 192

def xfrag(i, tb):
    n = (i * 2 + tb) * 4
    return acc(n, 4) if n < 256 else v(G1.XV + n - 256, 4)

LDS_R4 = 131072
def w1_slot(i):
    if i < 4: return LDS_R4 + i * 8192
    if i < 8: return 2 * 32768 + (i - 4) * 8192
    if i < 12: return 3 * 32768 + (i - 8) * 8192
    if i < 16: return 0 + (i - 12) * 8192
    if i < 19: return 32768 + (i - 16) * 8192
    return LDS_R4
LDS_MISC = 32768 + 3 * 8192

def g1_setup(a):
    g = G1; L = g.LANE; t0, t1, t2, t3 = g.T, g.T + 1, g.T + 2, g.T + 3
    a(f"""s_lshl_b32 s{sKX}, s{sROT}, 7
s_mul_i32 s{sKWQ}, s{sROT}, {64*3840}
s_mul_i32 s{sKW1}, s{sROT}, {64*3456}
s_lshl_b32 s{sM0X}, s{sWAVE}, 12
s_add_u32 s{sM0W}, s{sM0X}, 16384""")
    a(f"""s_lshl_b32 s{sT0}, s{sRB}, 7
s_lshl_b32 s{sT1}, s{sWAVE}, 5
s_add_u32 s{sT0}, s{sT0}, s{sT1}
v_lshrrev_b32 v{t0}, 3, v{L}
v_add_u32 v{t0}, s{sT0}, v{t0}
v_mul_u32_u24 v{t0}, 1280, v{t0}
v_and_b32 v{t1}, 7, v{L}
v_lshrrev_b32 v{t2}, 4, v{L}
v_xor_b32 v{t1}, v{t1}, v{t2}
v_lshl_add_u32 v{g.VX}, v{t1}, 4, v{t0}
v_xor_b32 v{t1}, 4, v{t1}
v_lshl_add_u32 v{g.VX+1}, v{t1}, 4, v{t0}
v_add_u32 v{g.VX+1}, {10240-1024}, v{g.VX+1}
v_add_u32 v{g.VX+2}, {2*(10240-1024)}, v{g.VX}
v_add_u32 v{g.VX+3}, {2*(10240-1024)}, v{g.VX+1}""")
    a(f"""s_min_u32 s{sT2}, s{sCG}, 14
s_lshl_b32 s{sT2}, s{sT2}, 8
s_lshl_b32 s{sT1}, s{sWAVE}, 4
v_lshrrev_b32 v{t2}, 4, v{L}
v_add_u32 v{t0}, s{sT1}, v{t2}
v_mul_u32_u24 v{t0}, 3840, v{t0}
v_and_b32 v{t1}, 15, v{L}
v_lshlrev_b32 v{t2}, 2, v{t2}
v_xor_b32 v{t1}, v{t1}, v{t2}
v_lshl_add_u32 v{t0}, v{t1}, 4, v{t0}
v_add_u32 v{g.VW}, s{sT2}, v{t0}
v_add_u32 v{g.VW+1}, {15360-1024}, v{g.VW}
v_add_u32 v{g.VW+2}, {2*(15360-1024)}, v{g.VW}
v_add_u32 v{g.VW+3}, {3*(15360-1024)}, v{g.VW}""")

def g1_setup2(a):
    g = G1; L = g.LANE; t0, t1, t2, t3 = g.T, g.T + 1, g.T + 2, g.T + 3
    a(f"""s_sub_u32 s{sHGA}, s{sCG}, 2
s_lshl_b32 s{sHGA}, s{sHGA}, 1
s_cmp_lt_u32 s{sCG}, 2
s_cselect_b32 s{sHGA}, 100, s{sHGA}
s_add_u32 s{sHGB}, s{sHGA}, 1
s_cmp_lt_u32 s{sCG}, 5
s_cselect_b32 s{sQS}, {fhex(QSCALE)}, 1.0""")
    a(f"""s_lshl_b32 s{sT1}, s{sWAVE}, 4
v_lshrrev_b32 v{t2}, 3, v{L}
v_add_u32 v{t0}, s{sT1}, v{t2}
v_mul_u32_u24 v{t0}, 3456, v{t0}
v_and_b32 v{t1}, 7, v{L}
v_bfe_u32 v{t2}, v{L}, 4, 1
v_lshlrev_b32 v{t2}, 2, v{t2}
v_xor_b32 v{t1}, v{t1}, v{t2}
v_lshl_add_u32 v{g.VW1}, v{t1}, 4, v{t0}
v_add_u32 v{g.VW1+1}, {8*3456-1024}, v{g.VW1}""")
    a(f"""v_and_b32 v{t0}, 31, v{L}
v_bfe_u32 v{t1}, v{L}, 1, 3
v_lshrrev_b32 v{t2}, 5, v{L}
v_xor_b32 v{t1}, v{t1}, v{t2}
s_lshl_b32 s{sT0}, s{sTH}, 1
v_xor_b32 v{t1}, s{sT0}, v{t1}
s_lshl_b32 s{sT0}, s{sTH}, 13
v_lshlrev_b32 v{t0}, 7, v{t0}
v_add_u32 v{t0}, s{sT0}, v{t0}""")
    for s_ in range(4):
        a(f"v_xor_b32 v{t2}, {2*s_}, v{t1}\nv_lshl_add_u32 v{g.AX+s_}, v{t2}, 4, v{t0}")
    cc, hr = t3, g.T + 4
    a(f"""v_bfe_u32 v{t0}, v{L}, 4, 1
v_and_b32 v{t1}, 1, v{L}
v_lshl_add_u32 v{cc}, v{t0}, 1, v{t1}
v_lshrrev_b32 v{t0}, 5, v{L}
v_bfe_u32 v{t1}, v{L}, 2, 2
v_lshl_add_u32 v{hr}, v{t0}, 3, v{t1}
v_bfe_u32 v{t2}, v{L}, 1, 1
v_lshlrev_b32 v{t2}, 3, v{t2}""")
    a(f"""s_lshl_b32 s{sT0}, s{sFH}, 3
v_add_u32 v{t0}, s{sT0}, v{cc}
v_lshlrev_b32 v{g.T+5}, 2, v{t1}
v_xor_b32 v{t0}, v{t0}, v{g.T+5}
v_lshl_add_u32 v{t0}, v{t0}, 4, v{t2}
v_lshl_add_u32 v{t0}, v{hr}, 8, v{t0}
v_add_u32 v{t0}, 16384, v{t0}
s_lshl_b32 s{sT1}, s{sTH}, 12
v_add_u32 v{g.AW}, s{sT1}, v{t0}
s_xor_b32 s{sT1}, s{sT1}, 4096
v_add_u32 v{g.AW+1}, s{sT1}, v{t0}
v_xor_b32 v{g.AW+2}, 64, v{g.AW}
v_xor_b32 v{g.AW+3}, 64, v{g.AW+1}""")
    a(f"""s_lshl_b32 s{sT0}, s{sFH}, 2
v_add_u32 v{t0}, s{sT0}, v{cc}
v_lshrrev_b32 v{g.T+5}, 1, v{t1}
v_lshlrev_b32 v{g.T+5}, 2, v{g.T+5}
v_xor_b32 v{t0}, v{t0}, v{g.T+5}
v_lshl_add_u32 v{t0}, v{t0}, 4, v{t2}
v_lshl_add_u32 v{t0}, v{hr}, 7, v{t0}
s_lshl_b32 s{sT1}, s{sTH}, 11
v_add_u32 v{g.AW2}, s{sT1}, v{t0}
s_xor_b32 s{sT1}, s{sT1}, 2048
v_add_u32 v{g.AW2+1}, s{sT1}, v{t0}""")
    a(f"""v_and_b32 v{t0}, 31, v{L}
v_cmp_eq_u32 vcc, 0, v{t0}
v_cmp_eq_u32 s[{sEX}:{sEX+1}], 20, v{t0}
s_or_b64 vcc, vcc, s[{sEX}:{sEX+1}]
v_mov_b32 v{t1}, 0x3f803f80
v_cndmask_b32 v{g.SEL}, 0, v{t1}, vcc
v_mov_b32 v{g.SEL+1}, v{g.SEL}
v_mov_b32 v{g.SEL+2}, v{g.SEL}
v_mov_b32 v{g.SEL+3}, v{g.SEL}""")
    a(f"""v_and_b32 v{t0}, 31, v{L}
v_lshrrev_b32 v{t1}, 5, v{L}
v_lshlrev_b32 v{t1}, 15, v{t1}
v_lshl_add_u32 v{g.VST}, v{t0}, 4, v{t1}
v_lshlrev_b32 v{g.VSH}, 4, v{L}""")
    a(f"""v_and_b32 v{t0}, 0x13, v{L}
v_bfe_u32 v{t1}, v{L}, 2, 1
v_lshl_or_b32 v{t0}, v{t1}, 3, v{t0}
v_bfe_u32 v{t1}, v{L}, 3, 1
v_lshl_or_b32 v{t0}, v{t1}, 2, v{t0}
v_lshlrev_b32 v{t0}, 1, v{t0}
s_lshl_b32 s{sT0}, s{sFH}, 6
v_add_u32 v{t0}, s{sT0}, v{t0}
v_cmp_gt_u32 vcc, 32, v{L}
v_mov_b32 v{t1}, 0x10000
v_cndmask_b32 v{t0}, v{t1}, v{t0}, vcc""")
    mk_srd(a, SRD_T2, P_B1, F * 2)
    a(f"""s_min_u32 s{sT0}, s{sHGA}, 26
s_lshl_b32 s{sT0}, s{sT0}, 7
s_min_u32 s{sT1}, s{sHGB}, 26
s_lshl_b32 s{sT1}, s{sT1}, 7
v_add_u32 v{t1}, s{sT0}, v{t0}
v_add_u32 v{t2}, s{sT1}, v{t0}
buffer_load_ushort v{g.B1}, v{t1}, {srd(SRD_T2)}, 0 offen
buffer_load_ushort v{g.B1+1}, v{t2}, {srd(SRD_T2)}, 0 offen""")

def g1_dma_p1(a, st):
    g = G1; base = (st % 4) * 32768
    a(f"s_add_u32 m0, s{sM0X}, {base}")
    for j in range(4):
        a(f"buffer_load_dwordx4 v{g.VX+j}, {srd(SRD_X)}, s{sKX} offen offset:{j*1024} lds", tag=("p1", st))
    a(f"s_add_u32 m0, s{sM0W}, {base}")
    a(f"s_add_u32 s{sKX}, s{sKX}, 128")
    for j in range(4):
        a(f"buffer_load_dwordx4 v{g.VW+j}, {srd(SRD_WQ)}, s{sKWQ} offen offset:{j*1024} lds", tag=("p1", st))
    a(f"""s_add_u32 s{sKWQ}, s{sKWQ}, {64*3840}
s_cmp_eq_u32 s{sKX}, 1280
s_cselect_b32 s{sKX}, 0, s{sKX}
s_cselect_b32 s{sKWQ}, 0, s{sKWQ}""")

def g1_dma_w1(a, i):
    g = G1
    if i == 0 or i == 10:
        a(f"s_min_u32 s{sST2}, s{sHGA if i == 0 else sHGB}, 26\ns_lshl_b32 s{sST2}, s{sST2}, 7")
    a(f"s_lshl_b32 s{sT0}, s{sWAVE}, 11\ns_add_u32 m0, s{sT0}, {w1_slot(i)}\ns_add_u32 s{sT0}, s{sKW1}, s{sST2}")
    for j in range(2):
        a(f"buffer_load_dwordx4 v{g.VW1+j}, {srd(SRD_W1)}, s{sT0} offen offset:{j*1024} lds", tag=("w1", i))
    a(f"""s_add_u32 s{sKW1}, s{sKW1}, {64*3456}
s_cmp_eq_u32 s{sKW1}, {640*3456}
s_cselect_b32 s{sKW1}, 0, s{sKW1}""")

def p1_reads(a, i):
    g = G1; st, s_ = divmod(i, 4); base = (st % 2) * 32768
    for fb in range(2):
        for u in range(2):
            a(f"ds_read_b64_tr_b16 {v(g.WFR+(i&1)*8+fb*4+2*u,2)}, v{g.AW+2*fb+(s_&1)} offset:{base + (s_&2)*4096 + u*1024}")
    for tb in range(2):
        a(f"ds_read_b128 {xfrag(i,tb)}, v{g.AX+s_} offset:{base + tb*4096}")

def p1_toggle(a):
    g = G1
    for r in list(range(g.AX, g.AX + 4)) + list(range(g.AW, g.AW + 4)):
        a(f"v_xor_b32 v{r}, 0x10000, v{r}")

def stats_load(a):
    g = G1; t0 = g.T + 8
    a(f"""s_lshl_b32 s{sT0}, s{sRB}, 7
s_lshl_b32 s{sT1}, s{sTH}, 6
s_add_u32 s{sT0}, s{sT0}, s{sT1}
s_lshl_b32 s{sT0}, s{sT0}, 5
s_add_u32 s{sT0}, s{sT0}, {WS_STATS}
v_and_b32 v{t0}, 31, v{g.LANE}
v_lshlrev_b32 v{t0}, 5, v{t0}""")
    for tb in range(2):
        for hh in range(2):
            a(f"buffer_load_dwordx4 {v(g.STAT+8*tb+4*hh,4)}, v{t0}, {srd(SRD_WS)}, s{sT0} offen offset:{tb*1024+hh*16} sc1")

def cs_write(a, n):
    g = G1; t0 = g.T + 9
    a(f"s_lshl_b32 s{sT0}, s{sWAVE}, 9\ns_add_u32 s{sT0}, s{sT0}, {LDS_MISC}\nv_lshl_add_u32 v{t0}, v{g.LANE}, 2, s{sT0}")
    for fb in range(n):
        a(f"ds_write_b32 v{t0}, v{g.CS+4*fb} offset:{fb*256}")

def cs_read_aug(a, n, bias):
    g = G1; t0, t1, t2 = g.T + 9, g.T + 10, g.T + 11
    a(f"v_and_b32 v{t0}, {~512 & 0xffffffff}, v{t0}")
    for fb in range(n):
        A = g.AUG + 4 * fb
        a(f"ds_read2st64_b32 {v(A+2,2)}, v{t0} offset0:{fb} offset1:{fb+2}")
    for fb in range(n):
        A = g.AUG + 4 * fb
        a(f"""v_add_f32 v{t1}, v{A+2}, v{A+3}
v_cvt_pk_bf16_f32 v{A}, v{t1}, v{t1}
v_and_b32 v{t2}, 0xffff0000, v{A}
v_sub_f32 v{t1}, v{t1}, v{t2}""")
        if bias is None:
            a(f"v_cvt_pk_bf16_f32 v{A+1}, v{t1}, 0\nv_mov_b32 v{A+2}, 0")
        else:
            a(f"v_cvt_pk_bf16_f32 v{A+1}, v{t1}, 0\nv_lshl_or_b32 v{A+1}, v{bias}, 16, v{A+1}\nv_mov_b32 v{A+2}, v{bias}")
        a(f"v_mov_b32 v{A+3}, 0")

def qkv_epilogue(a):
    g = G1
    for fb in range(2):
        for tb in range(2):
            A = g.ACC1 + (fb * 2 + tb) * 16
            a(f"v_mfma_f32_32x32x16_bf16 {v(A,16)}, {v(g.AUG+4*fb,4)}, {v(g.STAT+8*tb,4)}, {v(A,16)}")
    a(f"""s_lshl_b32 s{sT2}, s{sCG}, 1
s_add_u32 s{sT2}, s{sT2}, s{sFH}
s_lshl_b32 s{sT2}, s{sT2}, 18
s_lshl_b32 s{sT3}, s{sRB}, 1
s_add_u32 s{sT3}, s{sT3}, s{sTH}
s_lshl_b32 s{sT3}, s{sT3}, 10
s_add_u32 s{sT2}, s{sT2}, s{sT3}
s_add_u32 s{sT2}, s{sT2}, {WS_QKV}""")
    rs = [g.T + 12, g.T + 13]
    for tb in range(2):
        a(f"v_mul_f32 v{rs[tb]}, s{sQS}, v{g.STAT+8*tb+4}")
    for fb in range(2):
        for sg in range(2):
            if fb or sg: a(f"s_add_u32 s{sT2}, s{sT2}, 65536")
            for tb in range(2):
                A = g.ACC1 + (fb * 2 + tb) * 16 + 8 * sg
                for j in range(8):
                    a(f"v_mul_f32 v{A+j}, v{rs[tb]}, v{A+j}")
                for j in range(4):
                    a(f"v_cvt_pk_bf16_f32 v{A+j}, v{A+2*j}, v{A+2*j+1}")
                a(f"buffer_store_dwordx4 {v(A,4)}, v{g.VST}, {srd(SRD_WS)}, s{sT2} offen offset:{tb*512} sc1", tag="qkvst")

def gelu_epilogue(a, ACC, sHG):
    g = G1
    for tb in range(2):
        A = ACC + tb * 16
        a(f"v_mfma_f32_32x32x16_bf16 {v(A,16)}, {v(g.AUG,4)}, {v(g.STAT+8*tb,4)}, {v(A,16)}")
    a(f"""s_lshl_b32 s{sT2}, s{sRB}, 1
s_add_u32 s{sT2}, s{sT2}, s{sTH}
s_mul_i32 s{sT2}, s{sT2}, 216
s_lshl_b32 s{sT3}, s{sHG}, 2
s_add_u32 s{sT2}, s{sT2}, s{sT3}
s_lshl_b32 s{sT3}, s{sFH}, 1
s_add_u32 s{sT2}, s{sT2}, s{sT3}
s_lshl_b32 s{sT2}, s{sT2}, 10
s_add_u32 s{sT2}, s{sT2}, {WS_H}
s_mov_b32 s{SRD_T}, s{P_WS}
s_mov_b32 s{SRD_T+1}, s{P_WS+1}
s_mov_b32 s{SRD_T+3}, 0x20000""")
    a.atomic(f"s_cmp_lt_u32 s{sHG}, 27\ns_cselect_b32 s{SRD_T+2}, {WS_SIZE}, 0")
    T = [g.T + 0, g.T + 1, g.T + 2, g.T + 3]
    for tb in range(2):
        A1, B3, Sv = g.STAT + 8 * tb + 5, g.STAT + 8 * tb + 6, g.STAT + 8 * tb + 7
        if tb: a(f"s_add_u32 s{sT2}, s{sT2}, {108*1024}")
        for sg in range(2):
            A = ACC + tb * 16 + 8 * sg
            for j0 in range(0, 8, 4):
                for j in range(4): a(f"v_mul_f32 v{T[j]}, v{A+j0+j}, v{A+j0+j}")
                for j in range(4): a(f"v_fma_f32 v{T[j]}, v{T[j]}, v{B3}, v{A1}")
                for j in range(4): a(f"v_mul_f32 v{T[j]}, v{T[j]}, v{A+j0+j}")
                for j in range(4): a(f"v_exp_f32 v{T[j]}, v{T[j]}")
                for j in range(4): a(f"v_fma_f32 v{T[j]}, v{T[j]}, v{Sv}, v{Sv}")
                for j in range(4): a(f"v_rcp_f32 v{T[j]}, v{T[j]}")
                for j in range(4): a(f"v_mul_f32 v{A+j0+j}, v{T[j]}, v{A+j0+j}")
            for j in range(4):
                a(f"v_cvt_pk_bf16_f32 v{A+j}, v{A+2*j}, v{A+2*j+1}")
            a(f"buffer_store_dwordx4 {v(A,4)}, v{g.VSH}, {srd(SRD_T)}, s{sT2} offen offset:{sg*1024} sc1", tag="hst")

def pass1(a):
    g = G1
    a.wait_vm(("p1", 0)); a("s_barrier")
    p1_reads(a, 0)
    for i in range(40):
        st, s_ = divmod(i, 4)
        W = [v(g.WFR + (i & 1) * 8 + fb * 4, 4) for fb in range(2)]
        def mf(fb, tb):
            A = v(g.ACC1 + (fb * 2 + tb) * 16, 16)
            a(f"v_mfma_f32_32x32x16_bf16 {A}, {W[fb]}, {xfrag(i,tb)}, {A if i else 0}")
        mf(0, 0)
        if s_ < 3:
            p1_reads(a, i + 1)
            mf(0, 1);
        else:
            a.wait_lgkm()
            if st < 9: a.wait_vm(("p1", st + 1))
            else: a.wait_vm([("w1", 0), ("w1", 1)])
            a("s_barrier")
            if st % 2 == 1: p1_toggle(a)
            if st < 9: p1_reads(a, i + 1)
            mf(0, 1)
            if st + 4 < 10: g1_dma_p1(a, st + 4)
            if st == 5:
                for k in range(4): g1_dma_w1(a, k)
            if st in (6, 7, 8):
                for k in range(4): g1_dma_w1(a, 4 * (st - 5) + k)
            if st == 9:
                for k in range(3): g1_dma_w1(a, 16 + k)
        mf(1, 0); mf(1, 1)
        if i % 2 == 0:
            for fb in range(2):
                C = v(g.CS + 4 * fb, 4)
                a(f"v_mfma_f32_16x16x32_bf16 {C}, {v(g.SEL,4)}, {W[fb]}, {C if i else 0}")
        if i == 30: stats_load(a)

def p2_reads(a, n):
    g = G1; stg, s_ = divmod(n, 4); base = w1_slot(stg)
    hi = base >= 65536
    for u in range(2):
        a(f"ds_read_b64_tr_b16 {v(g.WFR+(n&3)*4+2*u,2)}, v{g.T+14+(s_&1)} offset:{(base & 0xffff) + (s_&2)*2048 + u*512}")

def p2_addr(a, stg):
    g = G1; hi = w1_slot(stg) & ~0xffff
    a(f"v_add_u32 v{g.T+14}, {hi}, v{g.AW2}\nv_add_u32 v{g.T+15}, {hi}, v{g.AW2+1}")

def pass2(a, sub_i, fillers, xbar):
    g = G1
    ACC = g.ACC2A if sub_i == 0 else g.ACC2B
    groups = []
    for i in range(40):
        n = sub_i * 40 + i
        stg, s_ = divmod(n, 4)
        b = Asm()
        W = v(g.WFR + (n & 3) * 4, 4)
        A = v(ACC, 16)
        b(f"v_mfma_f32_32x32x16_bf16 {A}, {W}, {xfrag(i,0)}, {A if i else 0}")
        nn = n + 2
        if nn < 80:
            if nn % 8 == 0:
                b.wait_vm([("w1", nn // 4), ("w1", nn // 4 + 1)])
                b("s_barrier")
            if nn % 4 == 0 and (w1_slot(nn // 4) >> 16) != (w1_slot(nn // 4 - 1) >> 16): p2_addr(b, nn // 4)
            p2_reads(b, nn)
            if nn == 8: g1_dma_w1(b, 19)
        if i == xbar:
            b.wait_lgkm(); b("s_barrier")
        groups.append(b.L)
        b = Asm()
        A = v(ACC + 16, 16)
        b(f"v_mfma_f32_32x32x16_bf16 {A}, {W}, {xfrag(i,1)}, {A if i else 0}")
        if i % 2 == 0:
            C = v(g.CS, 4)
            b(f"v_mfma_f32_16x16x32_bf16 {C}, {v(g.SEL,4)}, {W}, {C if i else 0}")
        groups.append(b.L)
    a.add(interleave(groups, fillers))

def gemm1(a):
    g = G1
    pass1(a)
    p2_addr(a, 0); p2_reads(a, 0); p2_reads(a, 1)
    cs_write(a, 2)
    f = [("after", 3)] + sub(lambda b: cs_read_aug(b, 2, None)) + sub(qkv_epilogue)
    pass2(a, 0, f, 1)
    cs_write(a, 1)
    f = [("after", 3)] + sub(lambda b: cs_read_aug(b, 1, g.B1)) + sub(lambda b: gelu_epilogue(b, g.ACC2A, sHGA))
    pass2(a, 1, f, 1)
    cs_write(a, 1)
    a.wait_lgkm(); a("s_barrier")
    cs_read_aug(a, 1, g.B1 + 1)
    gelu_epilogue(a, g.ACC2B, sHGB)


class AT:
    O = 0
    SB = 32
    Q = 96
    K = 108
    V = 132
    MK = 164
    LANE = 174
    AK = 175
    AKC = 176
    AV = 177
    T = 178
sMASK = 4
ATT_MASK0 = 36

def att_lds(base):
    return dict(K=base, V=base + 24576, ONES=base + 24576 + 3 * 8256)

def att_issue(a, base, vL, vt):
    g = AT; Lb = att_lds(base); t0, t1, t2, t3 = vt, vt + 1, vt + 2, vt + 3
    a(f"""s_mul_i32 s{sT0}, s{sH}, 5
s_lshr_b32 s{sT0}, s{sT0}, 1
s_and_b32 s{sT1}, s{sH}, 1
s_mov_b32 s{SRD_T}, s{P_WS}
s_mov_b32 s{SRD_T+1}, s{P_WS+1}
s_mov_b32 s{SRD_T+3}, 0x20000
s_or_b32 s{sT2}, s{sQB}, s{sTH}
s_cmp_eq_u32 s{sT2}, 0
s_cselect_b32 s{SRD_T+2}, 0, {WS_SIZE}
s_lshl_b32 s{sT2}, s{sQB}, 12
s_lshl_b32 s{sT3}, s{sTH}, 12
s_add_u32 s{sT2}, s{sT2}, s{sT3}
s_add_u32 s{sT2}, s{sT2}, {WS_QKV - 4096}
s_lshl_b32 s{sT4}, s{sT0}, 15
s_add_u32 s{sT2}, s{sT2}, s{sT4}
v_lshlrev_b32 v{t0}, 4, v{vL}""")
    for k in range(3):
        if k == 0:
            a(f"s_add_u32 s{sT4}, s{sT1}, s{sFH}\ns_add_u32 s{sT4}, s{sT4}, 80\ns_lshl_b32 s{sT5}, s{sFH}, 13\ns_add_u32 s{sT5}, s{sT5}, {Lb['K']}")
        elif k == 1:
            a(f"""s_lshl_b32 s{sT4}, s{sT1}, 1
s_sub_u32 s{sT4}, 82, s{sT4}
s_mov_b32 s{sT5}, {Lb['V']}
s_cmp_eq_u32 s{sFH}, 0
s_cselect_b32 s{sT4}, s{sT4}, 160
s_cselect_b32 s{sT5}, {Lb['K'] + 16384}, s{sT5}""")
        else:
            a(f"s_add_u32 s{sT4}, s{sFH}, 161\ns_mul_i32 s{sT5}, s{sFH}, 8256\ns_add_u32 s{sT5}, s{sT5}, {Lb['V'] + 8256}")
        a(f"s_lshl_b32 s{sT4}, s{sT4}, 15\ns_add_u32 m0, s{sT5}, s{sT3}\ns_add_u32 s{sT4}, s{sT4}, s{sT2}")
        for j in range(4):
            a(f"buffer_load_dwordx4 v{t0}, {srd(SRD_T)}, s{sT4} offen offset:{j*1024} sc1 lds", tag="kv")
    a(f"""s_add_u32 s{sT4}, s{sT0}, s{sT1}
s_lshl_b32 s{sT4}, s{sT4}, 15
s_lshl_b32 s{sT5}, s{sQB}, 12
s_lshl_b32 s{sT6}, s{sWAVE}, 10
s_add_u32 s{sT5}, s{sT5}, s{sT6}
s_add_u32 s{sT5}, s{sT5}, {WS_QKV}
s_add_u32 s{sT4}, s{sT4}, s{sT5}
s_lshl_b32 s{sT6}, s{sT1}, 1
s_sub_u32 s{sT6}, s{sT0}, s{sT6}
s_add_u32 s{sT6}, s{sT6}, 2
s_lshl_b32 s{sT6}, s{sT6}, 15
s_add_u32 s{sT6}, s{sT6}, s{sT5}
s_lshl_b32 s{sT7}, s{sT1}, 3
v_and_b32 v{t1}, 31, v{vL}
v_lshrrev_b32 v{t2}, 5, v{vL}
v_lshlrev_b32 v{t1}, 4, v{t1}
v_lshl_add_u32 v{t3}, v{t2}, 15, v{t1}
v_lshl_add_u32 v{t2}, v{t2}, 30, v{t1}
v_add_u32 v{t2}, s{sT7}, v{t2}""")
    for X in range(2):
        a(f"buffer_load_dwordx4 {v(g.Q+6*X,4)}, v{t3}, {srd(SRD_WS)}, s{sT4} offen offset:{X*512} sc1")
        a(f"buffer_load_dwordx2 {v(g.Q+6*X+4,2)}, v{t2}, {srd(SRD_WS)}, s{sT6} offen offset:{X*512} sc1")
    O4 = g.SB
    a(f"""s_or_b32 s{sT4}, s{sQB}, s{sFH}
s_cmp_eq_u32 s{sT4}, 0
s_cselect_b32 s{sT4}, 0, 0x3f803f80
v_mov_b32 v{O4}, s{sT4}
v_mov_b32 v{O4+1}, s{sT4}
v_mov_b32 v{O4+2}, s{sT4}
v_mov_b32 v{O4+3}, s{sT4}
s_lshl_b32 s{sT4}, s{sWAVE}, 11
s_add_u32 s{sT4}, s{sT4}, {Lb['ONES']}
v_add_u32 v{t0}, s{sT4}, v{t0}
ds_write_b128 v{t0}, {v(O4,4)}
ds_write_b128 v{t0}, {v(O4,4)} offset:1024""")
    a(f"""s_lshl_b32 s{sT4}, s{sWAVE}, 10
s_add_u32 s{sT5}, s{sT4}, {Lb['K']}
v_lshrrev_b32 v{t2}, 5, v{vL}
v_lshl_add_u32 v{g.AK}, v{t2}, 13, v{t1}
v_add_u32 v{g.AK}, s{sT5}, v{g.AK}
s_add_u32 s{sT5}, s{sT5}, 16384
s_add_u32 s{sT5}, s{sT5}, s{sT7}
v_add_u32 v{g.AKC}, s{sT5}, v{t1}""")
    a(f"""v_bfe_u32 v{t0}, v{vL}, 4, 1
v_and_b32 v{t1}, 3, v{vL}
v_lshl_add_u32 v{t0}, v{t0}, 2, v{t1}
v_add_u32 v{t1}, s{sT1}, v{t0}
v_cmp_lt_u32 vcc, 4, v{t0}
v_cndmask_b32 v{t1}, v{t1}, 6, vcc
v_lshrrev_b32 v{t0}, 1, v{t1}
v_mul_u32_u24 v{t0}, 8256, v{t0}
v_and_b32 v{t1}, 1, v{t1}
v_lshl_add_u32 v{t0}, v{t1}, 3, v{t0}
v_bfe_u32 v{t1}, v{vL}, 2, 2
v_lshl_add_u32 v{t1}, v{t2}, 2, v{t1}
v_lshl_add_u32 v{t0}, v{t1}, 4, v{t0}
s_add_u32 s{sT5}, s{sT4}, {Lb['V']}
v_add_u32 v{g.AV}, s{sT5}, v{t0}""".replace(f"v_cndmask_b32 v{t1}, v{t1}, 6, vcc", f"v_cndmask_b32_e64 v{t1}, v{t1}, 6, vcc"))
    a(f"""v_and_b32 v{t0}, 31, v{vL}
v_lshlrev_b32 v{t1}, 2, v{t2}
v_sub_u32 v{g.T+7}, v{t0}, v{t1}""")
    for j in range(8):
        c0 = 8 * ((2 * j) >> 2) + ((2 * j) & 3)
        a(f"""v_cmp_le_i32 vcc, {c0}, v{g.T+7}
v_cndmask_b32 v{g.MK+j}, 0, v{g.T+6}, vcc
v_cmp_le_i32 vcc, {c0+1}, v{g.T+7}
v_cndmask_b32 v{t0}, 0, v{g.T+5}, vcc
v_or_b32 v{g.MK+j}, v{g.MK+j}, v{t0}""" if j else f"""v_mov_b32 v{g.T+6}, 0xffff
v_mov_b32 v{g.T+5}, 0xffff0000
v_cmp_le_i32 vcc, {c0}, v{g.T+7}
v_cndmask_b32 v{g.MK+j}, 0, v{g.T+6}, vcc
v_cmp_le_i32 vcc, {c0+1}, v{g.T+7}
v_cndmask_b32 v{t0}, 0, v{g.T+5}, vcc
v_or_b32 v{g.MK+j}, v{g.MK+j}, v{t0}""")

def att_kv_read(a, slot, tau):
    g = AT
    a(f"ds_read_b128 {v(g.K+6*slot,4)}, v{g.AK} offset:{tau*512}")
    a(f"ds_read_b64 {v(g.K+6*slot+4,2)}, v{g.AKC} offset:{tau*512}")
    for sg in range(2):
        for u in range(2):
            a(f"ds_read_b64_tr_b16 {v(g.V+8*slot+4*sg+2*u,2)}, v{g.AV} offset:{tau*512 + sg*256 + u*128}")

def att_S(a, buf, slot, X):
    g = AT; Sb = v(g.SB + 16 * buf, 16)
    a(f"v_mfma_f32_32x32x16_bf16 {Sb}, {v(g.K+6*slot,4)}, {v(g.Q+6*X,4)}, 0")
    a(f"v_mfma_f32_32x32x8_bf16 {Sb}, {v(g.K+6*slot+4,2)}, {v(g.Q+6*X+4,2)}, {Sb}")

def att_PV(a, buf, slot, X, first):
    g = AT; O = v(g.O + 16 * X, 16); P = g.SB + 16 * buf
    a(f"v_mfma_f32_32x32x16_bf16 {O}, {v(g.V+8*slot,4)}, {v(P,4)}, {0 if first else O}")
    a(f"v_mfma_f32_32x32x16_bf16 {O}, {v(g.V+8*slot+4,4)}, {v(P+4,4)}, {O}")

def att_main(a):
    g = AT
    jobs = [(0, 1, None), (1, 1, 9)]
    for tau in range(2, 8): jobs += [(0, tau, None), (1, tau, None)]
    jobs += [(1, 8, None), (0, 0, 8)]
    loads = [1, 9, 2, 3, 4, 5, 6, 7, 8, 0]
    slot_of = {t: i % 4 for i, t in enumerate(loads)}
    first_use = {}
    last_use = {}
    for j, (X, t, t2) in enumerate(jobs):
        for tt in (t, t2):
            if tt is not None:
                first_use.setdefault(tt, j); last_use[tt] = j
    nb = 0
    bufs = []
    for j, (X, t, t2) in enumerate(jobs):
        if t2 is None: bufs.append((nb % 4,)); nb += 1
        else: bufs.append((nb % 4, (nb + 1) % 4)); nb += 2
    def S_items(j):
        X, t, t2 = jobs[j]
        f = lambda b: (att_S(b, bufs[j][0], slot_of[t], X), att_S(b, bufs[j][1], slot_of[t2], X) if t2 is not None else None)
        return sub(f)
    seen = set()
    def PV_items(j):
        X, t, t2 = jobs[j]
        first = X not in seen; seen.add(X)
        f = lambda b: (att_PV(b, bufs[j][0], slot_of[t], X, first), att_PV(b, bufs[j][1], slot_of[t2], X, False) if t2 is not None else None)
        return sub(f)
    def E_items(j):
        X, t, t2 = jobs[j]
        b = Asm()
        if t2 is None:
            P = g.SB + 16 * bufs[j][0]
            for r in range(16):
                b(f"v_exp_f32 v{P+r}, v{P+r}")
                if r % 2 == 1 and r >= 3: b(f"v_cvt_pk_bf16_f32 v{P+(r-2)//2}, v{P+r-3}, v{P+r-2}")
            b(f"v_nop\nv_cvt_pk_bf16_f32 v{P+7}, v{P+14}, v{P+15}")
        else:
            Pf = g.SB + 16 * bufs[j][0]; Pd = g.SB + 16 * bufs[j][1]
            for r in range(16):
                c = 8 * (r >> 2) + (r & 3)
                b(f"v_cmp_le_i32 s[{4+2*(r&1)}:{5+2*(r&1)}], {c}, v{g.T+7}")
                if r >= 1:
                    b(f"v_cndmask_b32 v{Pd+r-1}, v{Pf+r-1}, v{Pd+r-1}, s[{4+2*((r-1)&1)}:{5+2*((r-1)&1)}]")
                if r >= 2: b(f"v_exp_f32 v{Pd+r-2}, v{Pd+r-2}")
            b(f"v_nop\nv_cndmask_b32 v{Pd+15}, v{Pf+15}, v{Pd+15}, s[6:7]")
            b(f"v_exp_f32 v{Pd+14}, v{Pd+14}\nv_exp_f32 v{Pd+15}, v{Pd+15}")
            for k in range(8): b(f"v_cvt_pk_bf16_f32 v{Pd+k}, v{Pd+2*k}, v{Pd+2*k+1}")
            for k in range(8):
                b(f"v_bfi_b32 v{Pf+k}, v{g.MK+k}, 0, v{Pd+k}\nv_and_b32 v{Pd+k}, v{g.MK+k}, v{Pd+k}")
        return b.L
    for t in loads[:3]: att_kv_read(a, slot_of[t], t)
    a.add(S_items(0))
    nload = 3
    for j in range(len(jobs)):
        E = E_items(j)
        extra = []
        if j + 1 < len(jobs): extra.append((1, S_items(j + 1)))
        if j >= 1: extra.append((9, PV_items(j - 1)))
        while nload < len(loads):
            prev = loads[nload - 4] if nload >= 4 else None
            if prev is None or last_use[prev] <= j - 2:
                extra.append((8, sub(lambda b: att_kv_read(b, slot_of[loads[nload]], loads[nload])))); nload += 1
                break
            break
        out = []
        pend = []
        for pos, items in extra: pend += [(pos + 3 * k, it) for k, it in enumerate(items)]
        pend.sort(key=lambda x: x[0])
        for k, it in enumerate(E):
            while pend and pend[0][0] <= k: out.append(pend.pop(0)[1])
            out.append(it)
        out += [p[1] for p in pend]
        a.add(out)
    a.add(PV_items(len(jobs) - 1))
    assert nload == len(loads), nload

def att_finish(a, vL):
    g = AT; t0, t1, t2, t3 = g.T, g.T + 1, g.T + 2, g.T + 3
    a(f"""s_lshl_b32 s{sT0}, s{sQB}, 2
s_add_u32 s{sT0}, s{sT0}, s{sWAVE}
s_lshl_b32 s{sT0}, s{sT0}, 6
s_add_u32 s{sT0}, s{sT0}, s{sH}
s_lshl_b32 s{sT1}, s{sT0}, 10
s_add_u32 s{sT1}, s{sT1}, {WS_OF}
s_lshl_b32 s{sT2}, s{sT0}, 8
s_add_u32 s{sT2}, s{sT2}, {WS_OG}
s_add_u32 s{sT3}, s{sT1}, 32768
s_add_u32 s{sT4}, s{sT2}, 8192
v_lshlrev_b32 v{t2}, 4, v{vL}
v_lshrrev_b32 v{t3}, 5, v{vL}
v_lshlrev_b32 v{t3}, 30, v{t3}
v_lshl_or_b32 v{t3}, v{vL}, 3, v{t3}""")
    for X in range(2):
        O = g.O + 16 * X
        a(f"""v_mov_b32 v{t0}, v{O+8}
v_mov_b32 v{t1}, v{O+8}
v_permlane32_swap_b32 v{t0}, v{t1}
v_rcp_f32 v{t1}, v{t1}""")
        for r in range(12): a(f"v_mul_f32 v{O+r}, v{t1}, v{O+r}")
        for k in range(6): a(f"v_cvt_pk_bf16_f32 v{O+k}, v{O+2*k}, v{O+2*k+1}")
        a(f"buffer_store_dwordx4 {v(O,4)}, v{t2}, {srd(SRD_WS)}, s{sT1 if X == 0 else sT3} offen sc1", tag="ost")
        a(f"buffer_store_dwordx2 {v(O+4,2)}, v{t3}, {srd(SRD_WS)}, s{sT2 if X == 0 else sT4} offen sc1", tag="ost")

def k2():
    a = Asm(); a.kname = "k2"
    entry(a, AT.LANE)
    att_issue(a, 0, AT.LANE, AT.T)
    a.wait_vm("kv"); a.wait_lgkm(); a("s_barrier")
    att_main(a)
    att_finish(a, AT.LANE)
    a.wait_vm()
    a("L_end_k2:")
    return a

class FN:
    ACC = 0
    HB = 80
    B2 = 144
    XR = 164
    VH = 176
    VO = 178
    VG = 179
    VWF = 181
    VOUT = 184
    AR = 189
    T = 194
    LANE = 174
NSTEP = 19
WSLOTS = 12
sWFO, sHO = 80, 81

def fn_setup(a):
    g = FN; L = g.LANE; t0, t1, t2 = g.T, g.T + 1, g.T + 2
    a(f"""v_lshrrev_b32 v{t0}, 4, v{L}
v_and_b32 v{t1}, 15, v{L}
v_lshlrev_b32 v{t2}, 9, v{t0}
v_lshl_add_u32 v{g.VH}, v{t1}, 4, v{t2}
v_add_u32 v{g.VH+1}, {108*1024}, v{g.VH}
v_add_u32 v{g.VO}, 32768, v{g.VH}
v_lshl_add_u32 v{g.VG}, v{t1}, 3, v{t2}
v_add_u32 v{g.VG+1}, 8192, v{g.VG}
v_lshlrev_b32 v{g.VWF}, 4, v{L}
v_add_u32 v{g.VWF+1}, 4096, v{g.VWF}
s_mov_b32 s{SRD_T2}, s{P_WS}
s_mov_b32 s{SRD_T2+1}, s{P_WS+1}
s_mov_b32 s{SRD_T2+3}, 0x20000
s_cmp_lt_u32 s{sWAVE}, 2
s_cselect_b32 s{SRD_T2+2}, {WS_SIZE}, 0""")
    a(f"""s_mov_b32 s{SRD_T}, s{P_B2}
s_mov_b32 s{SRD_T+1}, s{P_B2+1}
s_mov_b32 s{SRD_T+3}, 0x20000
s_cmp_eq_u32 s{sWAVE}, 0
s_cselect_b32 s{SRD_T+2}, {D*2}, 0
s_mul_i32 s{sT0}, s{sCB}, 160
v_lshlrev_b32 v{t0}, 3, v{t0}
v_add_u32 v{t0}, s{sT0}, v{t0}""")
    for nb in range(5):
        a(f"buffer_load_dwordx2 {v(g.B2+4*nb+2,2)}, v{t0}, {srd(SRD_T)}, 0 offen offset:{nb*32}")
    for rho in range(5):
        a(f"""s_lshl_b32 s{sT1}, s{sWAVE}, 6
s_add_u32 s{sT1}, s{sT1}, {rho*256}
v_add_u32 v{t0}, s{sT1}, v{L}
v_mul_u32_u24 v{t1}, 3277, v{t0}
v_lshrrev_b32 v{t1}, 16, v{t1}
v_mul_u32_u24 v{t2}, 20, v{t1}
v_sub_u32 v{t0}, v{t0}, v{t2}
v_mul_u32_u24 v{t2}, 336, v{t1}
v_lshl_add_u32 v{g.AR+rho}, v{t0}, 4, v{t2}
v_mul_u32_u24 v{t2}, 1280, v{t1}
v_lshl_add_u32 v{g.VOUT+rho}, v{t0}, 3, v{t2}""")
    a(f"""s_mul_i32 s{sST3}, s{sTB}, {64*1280}
s_add_u32 s{sST3}, s{sST3}, s{sT0}""")
    for rho in range(5):
        a(f"buffer_load_dwordx2 {v(g.XR+2*rho,2)}, v{g.VOUT+rho}, {srd(SRD_X)}, s{sST3} offen")
    for nb in range(5):
        B = g.B2 + 4 * nb
        a(f"""v_lshlrev_b32 v{B}, 16, v{B+2}
v_and_b32 v{B+1}, 0xffff0000, v{B+2}
v_lshlrev_b32 v{B+2}, 16, v{B+3}
v_and_b32 v{B+3}, 0xffff0000, v{B+3}""")

def fn_wload(a, j):
    g = FN
    step0 = 4 * j if j < 14 else (54 + 4 * (j - 14) if j < 18 else 70)
    a(f"""s_add_u32 s{sT0}, s{sWAVE}, {step0}
s_mul_i32 s{sT0}, s{sT0}, 40
s_mul_i32 s{sT1}, s{sCB}, 5
s_add_u32 s{sT0}, s{sT0}, s{sT1}
s_lshl_b32 s{sT0}, s{sT0}, 10
s_add_u32 s{sT0}, s{sT0}, {WS_WF}""")
    R = SRD_T2 if j == 13 else SRD_WS
    for nb in range(5):
        a(f"buffer_load_dwordx4 {acc((j % WSLOTS)*20 + 4*nb, 4)}, v{g.VWF + (nb == 4)}, {srd(R)}, s{sT0} offen offset:{(nb & 3)*1024} sc1")

def fn_hload(a, j):
    g = FN; B = g.HB + (j % 4) * 16
    if j < 14:
        a(f"""s_mul_i32 s{sT0}, s{sTB}, 216
s_lshl_b32 s{sT1}, s{sWAVE}, 1
s_add_u32 s{sT0}, s{sT0}, s{sT1}
s_lshl_b32 s{sT0}, s{sT0}, 10
s_add_u32 s{sT0}, s{sT0}, {WS_H + 8192*j}""")
        R = SRD_T2 if j == 13 else SRD_WS
        for tb in range(4):
            a(f"buffer_load_dwordx4 {v(B+4*tb,4)}, v{g.VH+(tb>>1)}, {srd(R)}, s{sT0} offen offset:{(tb&1)*256} sc1")
    elif j < 18:
        a(f"""s_lshl_b32 s{sT0}, s{sTB}, 6
s_lshl_b32 s{sT1}, s{sWAVE}, 1
s_add_u32 s{sT0}, s{sT0}, s{sT1}
s_lshl_b32 s{sT0}, s{sT0}, 10
s_add_u32 s{sT0}, s{sT0}, {WS_OF + 8192*(j-14)}""")
        for tb in range(4):
            a(f"buffer_load_dwordx4 {v(B+4*tb,4)}, v{g.VH if tb < 2 else g.VO}, {srd(SRD_WS)}, s{sT0} offen offset:{(tb&1)*256} sc1")
    else:
        a(f"""s_lshl_b32 s{sT0}, s{sTB}, 14
s_lshl_b32 s{sT1}, s{sWAVE}, 11
s_add_u32 s{sT0}, s{sT0}, s{sT1}
s_add_u32 s{sT0}, s{sT0}, {WS_OG}""")
        for tb in range(4):
            for u in range(2):
                a(f"buffer_load_dwordx2 {v(B+4*tb+2*u,2)}, v{g.VG+(tb>>1)}, {srd(SRD_WS)}, s{sT0} offen offset:{u*256+(tb&1)*128} sc1")

def fn_step(a, j, fill):
    g = FN; B = g.HB + (j % 4) * 16
    groups = []
    for tb in range(4):
        for nb in range(5):
            A = v(g.ACC + (nb * 4 + tb) * 4, 4)
            groups.append([I(f"v_mfma_f32_16x16x32_bf16 {A}, {acc((j % WSLOTS)*20 + 4*nb, 4)}, {v(B+4*tb,4)}, {A if j else v(g.B2+4*nb,4)}")])
    a.add(interleave(groups, fill))

def fn_epilogue(a, lds):
    g = FN; L = g.LANE; t0, t1 = g.T, g.T + 1
    a(f"""v_and_b32 v{t0}, 15, v{L}
v_mul_u32_u24 v{t0}, 336, v{t0}
v_lshrrev_b32 v{t1}, 4, v{L}
v_lshl_add_u32 v{t0}, v{t1}, 4, v{t0}
s_mul_i32 s{sT0}, s{sWAVE}, {64*336}
s_add_u32 s{sT0}, s{sT0}, {lds}
v_add_u32 v{t0}, s{sT0}, v{t0}""")
    for tb in range(4):
        for nb in range(5):
            a(f"ds_write_b128 v{t0}, {v(g.ACC+(nb*4+tb)*4,4)} offset:{tb*16*336 + nb*64}")
    a.wait_lgkm(); a("s_barrier")
    for rho in range(5):
        for w in range(4):
            a(f"ds_read_b128 {v(rho*16+4*w,4)}, v{g.AR+rho} offset:{lds + w*64*336}")
    for rho in range(5):
        R = rho * 16; X = g.XR + 2 * rho
        a(f"""v_lshlrev_b32 v{t0}, 16, v{X}
v_and_b32 v{X}, 0xffff0000, v{X}
v_lshlrev_b32 v{t1}, 16, v{X+1}
v_and_b32 v{X+1}, 0xffff0000, v{X+1}""")
        for r, xr in enumerate((t0, X, t1, X + 1)):
            a(f"v_add_f32 v{R+r}, v{R+r}, v{R+4+r}\nv_add_f32 v{R+8+r}, v{R+8+r}, v{R+12+r}\nv_add_f32 v{R+r}, v{R+r}, v{xr}\nv_add_f32 v{R+r}, v{R+r}, v{R+8+r}")
        a(f"v_cvt_pk_bf16_f32 v{R}, v{R}, v{R+1}\nv_cvt_pk_bf16_f32 v{R+1}, v{R+2}, v{R+3}")
        a(f"buffer_store_dwordx2 {v(R,2)}, v{g.VOUT+rho}, {srd(SRD_OUT)}, s{sST3} offen")

def k3():
    a = Asm(); a.kname = "k3"
    entry(a, FN.LANE)
    fn_setup(a)
    for j in range(3):
        fn_wload(a, j); fn_hload(a, j)
    for j in range(3, WSLOTS): fn_wload(a, j)
    for j in range(NSTEP):
        fill = []
        if j + 3 < NSTEP: fill += sub(lambda b: fn_hload(b, j + 3))
        if j >= 1 and j - 1 + WSLOTS < NSTEP: fill += sub(lambda b: fn_wload(b, j - 1 + WSLOTS))
        fn_step(a, j, fill)
    fn_epilogue(a, 0)
    a.wait_vm()
    a("L_end_k3:")
    return a

def k1():
    a = Asm(); a.kname = "k1"
    entry(a, G1.LANE)
    g1_setup(a)
    for st in range(4): g1_dma_p1(a, st)
    g1_setup2(a)
    gemm1(a)
    a.wait_vm()
    a("L_end_k1:")
    return a

def build(kernels, path):
    hdr = open("cdna_kernels/" + NAME + ".s.ref").read().split("; Override launch")[0]
    s = hdr
    for name, a, lds, vg, ag in kernels:
        s += f"; @launch kernel={name}_kernel grid=(256,1,1) block=(256,1,1) lds={lds}\n"
    s += '.amdgcn_target "amdgcn-amd-amdhsa--gfx950"\n'
    for name, a, lds, vg, ag in kernels:
        rep = []
        L = finalize(a.L, rep)
        nn = sum(r[0] for r in rep)
        print(f"{name}: {len(L)} instrs, hazard nops: {len(rep)} sites / {nn} states", file=sys.stderr)
        if "-v" in sys.argv:
            for r in rep: print("   ", r, file=sys.stderr)
        s += kernel(name + "_kernel", L, vg, ag)
    open(path, "w").write(s)

if __name__ == "__main__":
    build([("k0", k0(), 16384, 64, 0), ("k1", k1(), 163840, 256, 256), ("k2", k2(), 163840, 256, 256), ("k3", k3(), 163840, 256, 256)], "dev.s")
```

```python
import sys
from mblib import *

def prologue():
    return """
  s_load_dwordx4 s[4:7], s[0:1], 0      ; out, x
  s_load_dwordx4 s[24:27], s[0:1], 16   ; wqkv, w1
  v_lshrrev_b32 v1, 6, v0               ; wave
  v_and_b32 v2, 63, v0                  ; lane
  s_nop 0
  v_readfirstlane_b32 s30, v1
  s_waitcnt lgkmcnt(0)
  s_mov_b32 s8, s4
  s_mov_b32 s9, s5
  s_mov_b32 s10, 0x100000
  s_mov_b32 s11, 0x20000
  s_mov_b32 s12, s6
  s_mov_b32 s13, s7
  s_mov_b32 s14, 2621440
  s_mov_b32 s15, 0x20000
  s_mov_b32 s16, s24
  s_mov_b32 s17, s25
  s_mov_b32 s18, 2457600
  s_mov_b32 s19, 0x20000
  s_mov_b32 s20, s26
  s_mov_b32 s21, s27
  s_mov_b32 s22, 2211840
  s_mov_b32 s23, 0x20000
  s_and_b32 s31, s2, 7
  s_lshr_b32 s32, s2, 3
  s_lshr_b32 s33, s31, 2
  s_lshl_b32 s33, s33, 2
  s_and_b32 s34, s32, 3
  s_add_u32 s33, s33, s34               ; rb
  s_and_b32 s34, s31, 3
  s_lshl_b32 s34, s34, 3
  s_lshr_b32 s35, s32, 2
  s_add_u32 s34, s34, s35               ; h
"""

def epilogue():
    return """
  s_waitcnt vmcnt(0)
  s_memtime s[42:43]
  s_memrealtime s[46:47]
  s_waitcnt lgkmcnt(0)
  s_sub_u32 s42, s42, s40
  s_sub_u32 s46, s46, s44
  v_mov_b32 v10, s42
  v_mov_b32 v11, s46
  s_lshl_b32 s3, s2, 4
  v_add_u32 v1, s3, v1
  v_lshlrev_b32 v1, 3, v1
  v_cmp_eq_u32 vcc, 0, v2
  s_and_saveexec_b64 s[50:51], vcc
  buffer_store_dwordx2 v[10:11], v1, s[8:11], 0 offen
  s_waitcnt vmcnt(0)
"""

def gemm1_stream(do_x=True, do_qkv=True, do_w1=True, nstage_flight=2, passes=1, barrier=True, flags=""):
    s = prologue()
    s += """
  s_lshl_b32 s36, s33, 8
  s_lshl_b32 s37, s30, 5
  s_add_u32 s36, s36, s37
  v_lshrrev_b32 v3, 3, v2
  v_add_u32 v3, s36, v3
  v_mul_u32_u24 v3, 1280, v3
  v_and_b32 v4, 7, v2
  v_lshlrev_b32 v4, 4, v4
  v_add_u32 v3, v3, v4                 ; x voff
  v_add_u32 v20, 10240, v3
  v_add_u32 v21, 20480, v3
  v_add_u32 v22, 30720, v3
  s_min_u32 s37, s34, 26
  s_lshl_b32 s37, s37, 7
  s_lshl_b32 s38, s30, 3
  v_lshrrev_b32 v5, 3, v2
  v_add_u32 v5, s38, v5
  v_mul_u32_u24 v5, 3456, v5
  v_add_u32 v5, v5, v4
  v_add_u32 v5, s37, v5                ; w1 voff
  ; idx = w*64+lane ; row = idx/9 ; c = idx%9 ; part = c/3 ; cc = c%3
  s_lshl_b32 s38, s30, 6
  v_add_u32 v6, s38, v2
  s_mov_b32 s39, 7282                   ; ceil(65536/9)
  v_mul_u32_u24 v7, s39, v6
  v_lshrrev_b32 v7, 16, v7              ; row
  v_mul_u32_u24 v8, 9, v7
  v_sub_u32 v8, v6, v8                  ; c
  v_mul_u32_u24 v9, 86, v8
  v_lshrrev_b32 v9, 8, v9               ; part = c/3
  v_mul_u32_u24 v12, 3, v9
  v_sub_u32 v12, v8, v12                ; cc
  v_mul_u32_u24 v7, 3840, v7
  v_mul_u32_u24 v9, 1280, v9
  v_lshlrev_b32 v12, 4, v12
  v_add3_u32 v7, v7, v9, v12
  s_mul_i32 s38, s34, 40
  v_add_u32 v7, s38, v7
  v_add_u32 v6, 512, v2
  v_mul_u32_u24 v13, s39, v6
  v_lshrrev_b32 v13, 16, v13
  v_mul_u32_u24 v8, 9, v13
  v_sub_u32 v8, v6, v8
  v_mul_u32_u24 v9, 86, v8
  v_lshrrev_b32 v9, 8, v9
  v_mul_u32_u24 v12, 3, v9
  v_sub_u32 v12, v8, v12
  v_mul_u32_u24 v13, 3840, v13
  v_mul_u32_u24 v9, 1280, v9
  v_lshlrev_b32 v12, 4, v12
  v_add3_u32 v13, v13, v9, v12
  v_add_u32 v13, s38, v13
  s_barrier
  s_memtime s[40:41]
  s_memrealtime s[44:45]
  s_waitcnt lgkmcnt(0)
"""
    per = (4 if do_x else 0) + (1 if do_w1 else 0) + (1 if do_qkv else 0)
    for p in range(passes):
      for st in range(10):
        slot = (p * 10 + st) % 3
        base = slot * 50176
        s += f"  s_lshl_b32 s37, s30, 12\n  s_add_u32 s37, s37, {base}\n"
        if do_x:
            s += f"  s_mov_b32 s36, {st*128}\n"
            for j, v in enumerate((3, 20, 21, 22)):
                s += f"  s_add_u32 m0, s37, {j*1024}\n  s_nop 0\n  buffer_load_dwordx4 v{v}, s[12:15], s36 offen {flags} lds\n"
        s += f"  s_lshl_b32 s37, s30, 10\n  s_add_u32 s37, s37, {base + 32768}\n"
        if do_w1:
            s += f"  s_mov_b32 s36, {st*64*3456}\n  s_mov_b32 m0, s37\n  s_nop 0\n  buffer_load_dwordx4 v5, s[20:23], s36 offen {flags} lds\n"
        if do_qkv:
            s += f"  s_mov_b32 s36, {st*64*3840}\n  s_add_u32 m0, s37, 8192\n  s_nop 0\n  buffer_load_dwordx4 v7, s[16:19], s36 offen {flags} lds\n"
            s += f"  s_cmp_lg_u32 s30, {st%8}\n  s_cbranch_scc1 Lskip_%N%_{p}_{st}\n"
            s += f"  s_mov_b32 m0, {base + 32768 + 8192 + 8192}\n  s_nop 0\n  buffer_load_dwordx4 v13, s[16:19], s36 offen {flags} lds\nLskip_%N%_{p}_{st}:\n"
        s += f"  s_waitcnt vmcnt({per * nstage_flight})\n"
        if barrier: s += "  s_barrier\n"
    s += epilogue()
    return s

FLUSH = """
  s_load_dwordx2 s[4:5], s[0:1], 0
  s_waitcnt lgkmcnt(0)
  s_mov_b32 s8, s4
  s_mov_b32 s9, s5
  s_mov_b32 s10, 0x40000000
  s_mov_b32 s11, 0x20000
  s_lshl_b32 s3, s2, 14
  v_lshlrev_b32 v1, 4, v0
  v_add_u32 v1, s3, v1
  v_mov_b32 v4, 0
  v_mov_b32 v5, 0
  v_mov_b32 v6, 0
  v_mov_b32 v7, 0
  buffer_store_dwordx4 v[4:7], v1, s[8:11], 0 offen
  v_add_u32 v1, 4096, v1
  buffer_store_dwordx4 v[4:7], v1, s[8:11], 0 offen
  v_add_u32 v1, 4096, v1
  buffer_store_dwordx4 v[4:7], v1, s[8:11], 0 offen
  v_add_u32 v1, 4096, v1
  buffer_store_dwordx4 v[4:7], v1, s[8:11], 0 offen
  s_waitcnt vmcnt(0)
"""

if __name__ == '__main__':
    ks = []
    cfg = {
     "all_f2": dict(),
     "all_f1": dict(nstage_flight=1),
     "all_f2_p2": dict(passes=2),
     "x_f2": dict(do_qkv=False, do_w1=False),
     "x_f2_p3": dict(do_qkv=False, do_w1=False, passes=3),
     "x_f4_p3": dict(do_qkv=False, do_w1=False, passes=3, nstage_flight=4),
     "qkv_f2_p3": dict(do_x=False, do_w1=False, passes=3),
     "qkv_f6_p3": dict(do_x=False, do_w1=False, passes=3, nstage_flight=6),
     "w1_f6_p3": dict(do_x=False, do_qkv=False, passes=3, nstage_flight=6),
     "all_f2_nobar": dict(barrier=False),
     "all_f4_nobar": dict(barrier=False, nstage_flight=4),
     "all_f2_p2_sc1": dict(passes=2, flags="sc1"),
    }
    for n, c in cfg.items():
        ks.append((n + "_kernel", gemm1_stream(**c).replace("%N%", n), 64, 0))
    ks.append(("flush_kernel", FLUSH, 16, 0))
    co = build(ks, "mb2")
    if len(sys.argv) > 1 and sys.argv[1] == "build": raise SystemExit(0)
    import cdna_launch as cl
    R = Runner(co, [k[0] for k in ks])
    out = cl.DeviceBuffer(1 << 20)
    rng = np.random.default_rng(0)
    x = cl.DeviceBuffer.from_numpy(rng.integers(0, 65535, 2621440 // 2 + 4096, dtype=np.uint16))
    wq = cl.DeviceBuffer.from_numpy(rng.integers(0, 65535, 2457600 // 2 + 4096, dtype=np.uint16))
    w1 = cl.DeviceBuffer.from_numpy(rng.integers(0, 65535, 2211840 // 2 + 4096, dtype=np.uint16))
    big = cl.DeviceBuffer(1 << 30)
    for n, c in cfg.items():
        for mode in ("cold", "warm"):
            rs = []
            for it in range(5):
                if mode == "cold":
                    R.launch("flush_kernel", (1 << 16, 1, 1), (256, 1, 1), [big.ptr])
                R.launch(n + "_kernel", (256, 1, 1), (512, 1, 1), [out.ptr, x.ptr, wq.ptr, w1.ptr], lds=160 * 1024)
                R.sync()
                o = out.to_numpy(np.uint32, (1 << 18,))[: 256 * 32].reshape(256, 16, 2)[:, :8, :]
                rs.append((np.median(o[:, :, 0]), o[:, :, 0].max(), np.median(o[:, :, 1]), o[:, :, 1].max()))
            r = rs[-1]; r2 = rs[-2]
            print(f"{n:16s} {mode}: cyc med {r[0]:.0f} max {r[1]} | rt(10ns) med {r[2]:.0f} max {r[3]}   (prev: {r2[0]:.0f} {r2[1]} {r2[2]:.0f} {r2[3]})")
```

```python
import sys
from mblib import *
from mb2 import FLUSH

def k(delay, share, n=24):
    s = f"""
  s_load_dwordx4 s[4:7], s[0:1], 0
  s_load_dwordx2 s[24:25], s[0:1], 16
  v_lshrrev_b32 v1, 6, v0
  v_and_b32 v2, 63, v0
  s_nop 0
  v_readfirstlane_b32 s30, v1
  s_waitcnt lgkmcnt(0)
  s_mov_b32 s8, s4
  s_mov_b32 s9, s5
  s_mov_b32 s10, 0x100000
  s_mov_b32 s11, 0x20000
  s_mov_b32 s12, s6
  s_mov_b32 s13, s7
  s_mov_b32 s14, 0x10000000
  s_mov_b32 s15, 0x20000
  v_lshlrev_b32 v3, 4, v0
  s_mul_i32 s36, s2, 32768
  s_add_u32 s36, s36, 0x100000
  v_add_u32 v4, s36, v3
  v_mov_b32 v20, s24
  v_mov_b32 v21, s24
  v_mov_b32 v22, s24
  v_mov_b32 v23, s24
"""
    for i in range(8): s += f"  s_mov_b32 s36, {i*4096}\n  buffer_store_dwordx4 v[20:23], v4, s[12:15], s36 offen sc1\n"
    s += """
  s_waitcnt vmcnt(0)
  s_barrier
  s_lshl_b32 s36, s2, 7
  v_mov_b32 v5, s36
  s_cmp_lg_u32 s30, 0
  s_cbranch_scc1 L1_%N%
  s_mov_b64 exec, 1
  buffer_store_dword v20, v5, s[12:15], 0 offen sc1
  s_mov_b64 exec, -1
L1_%N%:
  ; poll all 256 flags (4 per lane)
  v_lshlrev_b32 v6, 7, v2
  s_mov_b32 s39, 0
Lp_%N%:
  buffer_load_dword v7, v6, s[12:15], 0 offen sc1
  s_mov_b32 s36, 8192
  buffer_load_dword v8, v6, s[12:15], s36 offen sc1
  s_mov_b32 s36, 16384
  buffer_load_dword v9, v6, s[12:15], s36 offen sc1
  s_mov_b32 s36, 24576
  buffer_load_dword v10, v6, s[12:15], s36 offen sc1
  s_add_u32 s39, s39, 1
  s_waitcnt vmcnt(0)
  v_xor_b32 v7, s24, v7
  v_xor_b32 v8, s24, v8
  v_xor_b32 v9, s24, v9
  v_xor_b32 v10, s24, v10
  v_or3_b32 v7, v7, v8, v9
  v_or_b32 v7, v7, v10
  v_cmp_ne_u32 vcc, 0, v7
  s_cmp_gt_u32 s39, 100000
  s_cbranch_scc1 Lo_%N%
  s_cbranch_vccnz Lp_%N%
Lo_%N%:
""" + "  s_sleep 16\n" * delay + f"""
  ; region: WGs of one XCD with equal (loc % (32/share)) read the same n*4KB taken from other producers
  s_and_b32 s31, s2, 7
  s_lshr_b32 s32, s2, 3
  s_and_b32 s32, s32, {32//share - 1}
  s_mul_i32 s31, s31, {32//share}
  s_add_u32 s32, s32, s31
  s_mul_i32 s36, s32, {(8<<20) // (256//share)}
  s_add_u32 s36, s36, 0x100000
  v_add_u32 v4, s36, v3
  v_mov_b32 v11, 0
  s_barrier
  s_memtime s[40:41]
  s_waitcnt lgkmcnt(0)
  buffer_load_dwordx4 v[24:27], v4, s[12:15], 0 offen sc1
  s_waitcnt vmcnt(0)
  s_memtime s[42:43]
  s_waitcnt lgkmcnt(0)
  s_sub_u32 s42, s42, s40
  v_writelane_b32 v11, s42, 0
"""
    for i in range(1, n): s += f"  s_mov_b32 s36, {i*4096}\n  buffer_load_dwordx4 v[{24+4*i}:{27+4*i}], v4, s[12:15], s36 offen sc1\n"
    s += """
  s_waitcnt vmcnt(0)
  s_memtime s[42:43]
  s_waitcnt lgkmcnt(0)
  s_sub_u32 s42, s42, s40
  v_writelane_b32 v11, s42, 1
  s_lshl_b32 s3, s2, 2
  s_add_u32 s3, s3, s30
  s_lshl_b32 s3, s3, 3
  v_lshlrev_b32 v2, 2, v2
  s_mov_b64 exec, 3
  buffer_store_dword v11, v2, s[8:11], s3 offen
  s_waitcnt vmcnt(0)
"""
    return s
cfg = {f"d{d}_s{sh}": k(d, sh) for d in (0, 4) for sh in (4, 8)}
ks = [(n + "_kernel", b.replace("%N%", n), 160, 0) for n, b in cfg.items()]
ks.append(("flush_kernel", FLUSH, 16, 0))
co = build(ks, "mb20")
if len(sys.argv) > 1 and sys.argv[1] == "build": raise SystemExit(0)
import cdna_launch as cl
R = Runner(co, [k_[0] for k_ in ks])
out = cl.DeviceBuffer(1 << 20); ws = cl.DeviceBuffer(1 << 28); big = cl.DeviceBuffer(1 << 30)
tag = 77
for n in cfg:
    for mode in ("wsfill_flush", "wsfill"):
        for it in range(3):
            tag += 1
            R.launch("flush_kernel", (1 << 10, 1, 1), (256, 1, 1), [ws.ptr])
            if mode == "wsfill_flush": R.launch("flush_kernel", (1 << 15, 1, 1), (256, 1, 1), [big.ptr])
            R.launch(n + "_kernel", (256, 1, 1), (256, 1, 1), [out.ptr, ws.ptr, tag], lds=160 * 1024)
            R.sync()
        o = out.to_numpy(np.uint32, (2048,)).reshape(1024, 2)
        print(f"{n} {mode:13s} first load {int(np.median(o[:,0]))} (max {o[:,0].max()})  +23 loads {int(np.median(o[:,1]-o[:,0]))} -> {np.median(o[:,1]-o[:,0])/23:.0f}/load")
```
